```python
import torch

def _softmax(x, axis=-1):
    return torch.softmax(x, dim=axis)

def _gelu(x):
    return torch.nn.functional.gelu(x, approximate='tanh')

def _silu(x):
    return torch.nn.functional.silu(x)

def _sigmoid(x):
    return torch.sigmoid(x)

def _layernorm(x, axis=-1, eps=1e-05):
    m = x.mean(dim=axis, keepdim=True)
    v = x.var(dim=axis, keepdim=True, unbiased=False)
    return (x - m) / torch.sqrt(v + eps)

def _scatter_add(tgt, idx, src, axis=0):
    return tgt.clone().index_add_(axis, idx, src)

def _segment_sum(src, seg, n):
    out = torch.zeros((n,) + src.shape[1:], dtype=src.dtype)
    return out.index_add_(0, seg, src)

def _pad(x, pw):
    flat = tuple((v for pair in reversed(pw) for v in pair))
    return torch.nn.functional.pad(x, flat)
kernel_name = 'standalone__transposed_strided__vision'

def setup_inputs():

    _w = lambda a: (lambda t: t.to(torch.bfloat16) if t.is_floating_point() else t)(torch.as_tensor(a))
    H = W = 224
    C = 96
    return {'x': _w((lambda *s: torch.randn(*s, dtype=torch.bfloat16) * 0.05)(1, H, W, C)), 'w': _w((lambda *s: torch.randn(*s, dtype=torch.bfloat16) * 0.05)(4, 4, C, C)), 'b': _w((lambda *s: torch.randn(*s, dtype=torch.bfloat16) * 0.05)(C))}

def reference(x, w, b):
    B, H, W, C = x.shape
    s, k = (2, 4)
    xe = x[:, :, None, :, None, :].clone()
    xz = _pad(xe, ((0, 0), (0, 0), (0, s - 1), (0, 0), (0, s - 1), (0, 0)))
    xz = xz.reshape(B, H * s, W * s, C)[:, :(H - 1) * s + 1, :(W - 1) * s + 1, :]
    xp = _pad(xz, ((0, 0), (k - 1, k - 1), (k - 1, k - 1), (0, 0)))
    Ho, Wo = ((H - 1) * s + k, (W - 1) * s + k)
    out = 0
    for i in range(k):
        for j in range(k):
            out = out + torch.einsum('bhwc,cd->bhwd', xp[:, i:i + Ho, j:j + Wo, :], w[k - 1 - i, k - 1 - j])
    return out[:, 1:-1, 1:-1, :] + b
```

```python
import sys
KNAME = "standalone__transposed_strided__vision_kernel"
XB = 9633792; WB = 294912; OB = 38535168
XROW = 224*192
OROW2 = 2*448*192
CH = 6160
WREG = 12*CH
XBASE = 73984
NS = 5
SLOT = 4096
LDS = XBASE + 4*NS*SLOT

class Em:
    def __init__(s):
        s.L = []; s.vm = []; s.lg = []; s.vm_done = 0; s.lg_done = 0
    def clone(s):
        e = Em(); e.vm = list(s.vm); e.lg = list(s.lg); e.vm_done = s.vm_done; e.lg_done = s.lg_done
        return e
    def a(s, t): s.L.append("    " + t)
    def lab(s, t): s.L.append(t + ":")
    def vmem(s, tag, t): s.a(t); s.vm.append(tag)
    def lds(s, tag, t): s.a(t); s.lg.append(tag)
    def wait_vm(s, tag):
        idx = max(i for i, x in enumerate(s.vm) if x == tag) + 1
        if idx <= s.vm_done: return
        n = len(s.vm) - idx
        assert n <= 63
        s.a(f"s_waitcnt vmcnt({n})"); s.vm_done = idx
    def wait_lg(s, tag):
        idx = max(i for i, x in enumerate(s.lg) if x == tag) + 1
        if idx <= s.lg_done: return
        n = len(s.lg) - idx
        assert n <= 15, n
        s.a(f"s_waitcnt lgkmcnt({n})"); s.lg_done = idx

def gen(opt):
    stf = opt.get("stflags", "sc1")
    T0 = opt.get("prof", False)
    XMASK = opt.get("xmask", 1)
    PREF = opt.get("pref", 1)
    e = Em(); a = e.a
    V = 0
    def alloc(n, al=1):
        nonlocal V
        V = (V + al - 1)//al*al
        r = V; V += n; return r
    v_tid = alloc(1)
    vT = alloc(5)
    vPf = alloc(1)
    vX = alloc(4)
    vWd = alloc(3)
    vB = alloc(2)
    vW = alloc(2)
    vO = alloc(1)
    vBi = alloc(1)
    vO3 = alloc(3)
    vTch = alloc(1)
    vF = [alloc(24, 4) for _ in range(3)]
    NQ = 14
    vAcc = alloc(4*NQ, 4)
    vBias = alloc(24, 4)
    NPK = 4
    vPk = alloc(4*NPK, 4)
    vWv = alloc(32, 4)
    assert V <= 256, V
    def wfrag(f):
        return (f"a[{4*f}:{4*f+3}]" if f < 64 else f"v[{vWv+4*(f-64)}:{vWv+4*(f-64)+3}]")
    def whalf(f, h):
        if f < 64: return f"a[{4*f+2*h}:{4*f+2*h+1}]"
        r = vWv+4*(f-64)+2*h
        return f"v[{r}:{r+1}]"
    def Ffrag(row, b, ks):
        r = vF[row % 3] + 4*(b*3+ks)
        return f"v[{r}:{r+3}]"
    def q4(r): return f"v[{r}:{r+3}]"
    sX, sX2, sW, sBs, sO = 12, 16, 20, 24, 28
    s_w, s_wh, s_o, s_px, s_py, s_strip, s_band, s_m0, s_R = 32, 33, 34, 35, 36, 37, 38, 39, 40
    s_t0, s_t1, s_t2, s_t3 = 41, 42, 43, 44
    s_xrow, s_iy, s_xb, s_pb, s_wmb = 45, 46, 47, 48, 49
    s_wo = 50
    s_or = 56
    s_mk = 60
    s_pc = 66
    PM = opt.get("pm", 1)
    def stamp(i, pm=1):
        if T0 and pm == PM: a(f"s_memrealtime s[{70+2*i}:{71+2*i}]")
    def cstamp(i):
        if T0: a(f"s_memtime s[{86+2*i}:{87+2*i}]")
    def qabk(q):
        aa = 1 - q//6; b = (q % 6)//3; ks = q % 3
        return aa, b, ks
    def wconst(q):
        aa, b, ks = qabk(q)
        return (8*aa + 2*b)*18432 + ks*6144
    t1, t2, t3, t4, t5 = [vT+i for i in range(5)]
    stamp(0); stamp(0, 2); stamp(0, 3); stamp(0, 4)
    a("s_cmp_ge_u32 s2, 256")
    a("s_cbranch_scc1 L_end")
    a("s_load_dwordx4 s[4:7], s[0:1], 0")
    a("s_load_dwordx4 s[8:11], s[0:1], 16")
    if PREF:
        a(f"s_getpc_b64 s[{s_pc}:{s_pc+1}]")
        e.lab("L_pc")
        a(f"v_lshlrev_b32 v{t1}, 6, v0")
        a(f"v_min_u32 v{t1}, L_codeend-L_pc-4, v{t1}")
        a(f"v_mov_b32 v{t3}, s{s_pc+1}")
        a(f"v_add_co_u32 v{t2}, vcc, s{s_pc}, v{t1}")
    a(f"v_lshrrev_b32 v{t4}, 6, v0")
    a(f"v_and_b32 v0, 63, v0")
    if PREF:
        a(f"v_addc_co_u32 v{t3}, vcc, 0, v{t3}, vcc")
    a(f"v_readfirstlane_b32 s{s_w}, v{t4}")
    if PREF:
        assert t2 % 2 == 0
        e.vmem("PF", f"global_load_dword v{vPf}, v[{t2}:{t3}], off")
    a(f"s_and_b32 s{s_t0}, s2, 7")
    a(f"s_lshr_b32 s{s_t1}, s2, 5")
    a(f"s_lshl3_add_u32 s{s_t1}, s{s_t1}, s{s_t0}" if False else f"s_lshl_b32 s{s_t1}, s{s_t1}, 3")
    a(f"s_add_u32 s{s_t1}, s{s_t1}, s{s_t0}")
    a(f"s_cmp_ge_u32 s{s_t1}, 63")
    a("s_cbranch_scc1 L_end")
    a(f"s_bfe_u32 s{s_px}, s2, 0x10003")
    a(f"s_bfe_u32 s{s_py}, s2, 0x10004")
    a(f"s_lshl2_add_u32 s{s_t1}, s{s_t1}, s{s_w}")
    a(f"s_mul_i32 s{s_band}, s{s_t1}, 4682")
    a(f"s_lshr_b32 s{s_band}, s{s_band}, 16")
    a(f"s_mul_i32 s{s_t0}, s{s_band}, 14")
    a(f"s_sub_u32 s{s_strip}, s{s_t1}, s{s_t0}")
    a(f"s_min_u32 s{s_t0}, s{s_band}, 8")
    a(f"s_mul_i32 s{s_m0}, s{s_band}, 12")
    a(f"s_add_u32 s{s_m0}, s{s_m0}, s{s_t0}")
    a(f"s_add_u32 s{s_iy}, s{s_m0}, s{s_py}")
    a(f"s_sub_u32 s{s_iy}, s{s_iy}, 1")
    a(f"s_mul_i32 s{s_xrow}, s{s_iy}, {XROW}")
    a(f"s_lshl4_add_u32 s{s_t0}, s{s_strip}, s{s_px}")
    a(f"s_sub_u32 s{s_t1}, s{s_t0}, 1")
    a(f"s_mulk_i32 s{s_t1}, 192")
    a(f"s_cmp_eq_u32 s{s_t0}, 0")
    a(f"s_cselect_b32 s{s_t2}, 12, 0")
    a(f"s_cmpk_gt_u32 s{s_t0}, 208")
    a(f"s_cselect_b32 s{s_t3}, 0, 12")
    a(f"s_mov_b32 s{s_mk}, 0")
    a(f"s_mov_b32 s{s_mk+1}, 0xffff0000")
    a(f"s_mov_b32 s{s_mk+2}, -1")
    a(f"s_mov_b32 s{s_mk+3}, 0")
    a(f"s_mov_b32 s{s_mk+4}, 0xffff0000")
    a(f"s_mov_b32 s{s_mk+5}, -1")
    a(f"v_lshlrev_b32 v{vWd}, 4, v0")
    a(f"v_xor_b32 v{t1}, 32, v{vWd}")
    a(f"v_add_u32 v{t1}, s{s_t1}, v{t1}")
    a(f"v_add_u32 v{vX+3}, s{s_t1}, v{vWd}")
    a(f"v_bfrev_b32 v{t3}, 1")
    a(f"v_cmp_gt_u32 vcc, s{s_t2}, v0")
    a(f"v_cndmask_b32 v{vX}, v{vX+3}, v{t1}, s[{s_mk}:{s_mk+1}]")
    a(f"v_cndmask_b32 v{vX+1}, v{vX+3}, v{t1}, s[{s_mk+2}:{s_mk+3}]")
    a(f"v_cndmask_b32 v{vX}, v{vX}, v{t3}, vcc")
    a(f"v_cmp_le_u32 vcc, s{s_t3}, v0")
    a(f"v_cndmask_b32 v{vX+2}, v{vX+3}, v{t1}, s[{s_mk+4}:{s_mk+5}]")
    a(f"v_lshrrev_b32 v{t2}, 5, v0")
    a(f"v_cndmask_b32 v{vX+3}, v{vX+3}, v{t3}, vcc")
    a(f"v_mul_u32_u24 v{t2}, 1536, v{t2}")
    a(f"v_add_u32 v{vWd+1}, v{vWd}, v{t2}")
    a(f"v_add_u32 v{vWd+2}, 1536, v{vWd}")
    a(f"s_lshr_b32 s{s_wh}, s{s_w}, 1")
    a(f"s_and_b32 s{s_o}, s{s_w}, 1")
    a(f"s_lshl2_add_u32 s{s_t0}, s{s_py}, s{s_px}")
    a(f"s_sub_u32 s{s_t0}, 5, s{s_t0}")
    a(f"s_mul_i32 s{s_pb}, s{s_t0}, 18432")
    a(f"s_mul_i32 s{s_t0}, s{s_o}, 1536")
    a(f"s_add_u32 s{s_pb}, s{s_pb}, s{s_t0}")
    a(f"s_mul_i32 s{s_t2}, s{s_o}, 3080")
    a(f"s_mul_i32 s{s_t3}, s{s_wh}, {CH}")
    a(f"s_add_u32 s{s_wmb}, s{s_t2}, s{s_t3}")
    a(f"s_mul_i32 s{s_xb}, s{s_w}, {NS*SLOT}")
    a(f"s_add_u32 s{s_xb}, s{s_xb}, {XBASE}")
    def wo_calc(j):
        c0, c1 = wconst(2*j), wconst(2*j+1)
        a(f"s_cmp_eq_u32 s{s_wh}, 0")
        a(f"s_mov_b32 s{s_t0}, {c1}")
        a(f"s_cselect_b32 s{s_t0}, {c0}, s{s_t0}")
        a(f"s_add_u32 s{s_wo+j}, s{s_t0}, s{s_pb}")
    wo_calc(0)
    for s_, size in ((sX, XB), (sW, WB)):
        a(f"s_mov_b32 s{s_+2}, {size}")
        a(f"s_mov_b32 s{s_+3}, 0x20000")
    a(f"s_mov_b32 s{sX2+3}, 0x20000")
    a("s_waitcnt lgkmcnt(0)")
    stamp(1); stamp(1, 3)
    for s_, p in ((sX2, 4), (sW, 6), (sX, 4)):
        a(f"s_mov_b32 s{s_}, s{p}")
        a(f"s_and_b32 s{s_+1}, s{p+1}, 0xffff")

    def xrow_dma(r):
        L = []
        chk = r in (0, 12, 13)
        srd = sX2 if chk else sX
        def pre():
            if chk:
                a(f"s_cmp_lt_u32 s{s_iy}, 224")
                a(f"s_cselect_b32 s{sX2+2}, {XB}, 0")
            a(f"s_add_u32 m0, s{s_xb}, {(r % NS)*SLOT}")
        L.append(pre)
        for k in range(4):
            def ld(k=k):
                off = f" offset:{1024*k}" if k else ""
                if k == 3 and XMASK: a("s_mov_b64 exec, 0xfff")
                e.vmem(f"X{r}", f"buffer_load_dwordx4 v{vX+k}, s[{srd}:{srd+3}], s{s_xrow} offen{off} lds")
                if k == 3 and XMASK: a("s_mov_b64 exec, -1")
            L.append(ld)
        def post():
            if opt.get("samerow") and r >= 4:
                a(f"s_mov_b32 s{s_xrow}, {XROW*5}")
            else:
                a(f"s_add_u32 s{s_xrow}, s{s_xrow}, {XROW}")
            a(f"s_add_u32 s{s_iy}, s{s_iy}, 1")
        L.append(post)
        return L
    def w_dma(j):
        L = []
        def pre():
            if j > 0: wo_calc(j)
            a(f"s_add_u32 m0, s{s_wmb}, {2*j*CH}")
        L.append(pre)
        for k in range(3):
            def ld(k=k):
                off = f" offset:{1024*k}" if k else ""
                e.vmem(f"W{j}", f"buffer_load_dwordx4 v{vWd+k}, s[{sW}:{sW+3}], s{s_wo+j} offen{off} lds")
            L.append(ld)
        return L
    def run(L):
        for i, f in enumerate(L):
            f()
            if i == 0: a("s_nop 0")
    def f_reads(r):
        L = []
        for b in range(2):
            for ks in range(3):
                def rd(b=b, ks=ks):
                    e.lds(f"F{r}", f"ds_read_b128 {Ffrag(r, b, ks)}, v{vB+b} offset:{(r % NS)*SLOT + 64*ks}")
                L.append(rd)
        return L
    s_tch = 68
    def touch_setup():
        a(f"s_lshl_b32 s{s_t0}, s{s_strip}, 4")
        a(f"s_sub_i32 s{s_t0}, s{s_t0}, 1")
        a(f"s_max_i32 s{s_t0}, s{s_t0}, 0")
        a(f"s_mulk_i32 s{s_t0}, 192")
        a(f"v_lshlrev_b32 v{vTch}, 6, v0")
        a(f"v_add_u32 v{vTch}, s{s_t0}, v{vTch}")
        a(f"s_lshl1_add_u32 s{s_t0}, s{s_py}, s{s_px}")
        a(f"s_add_u32 s{s_t0}, s{s_t0}, s{s_m0}")
        a(f"s_add_u32 s{s_tch}, s{s_t0}, {opt.get('tch0', 4)}")
    def touch(i):
        def f():
            a(f"s_min_u32 s{s_tch+1}, s{s_tch}, 223")
            a(f"s_mul_i32 s{s_tch+1}, s{s_tch+1}, {XROW}")
            e.vmem("TC", f"buffer_load_dword v{vPf}, v{vTch}, s[{sX}:{sX+3}], s{s_tch+1} offen")
            a(f"s_add_u32 s{s_tch}, s{s_tch}, 4")
        return f
    run(xrow_dma(0))
    stamp(2, 3)
    run(w_dma(0))
    run(xrow_dma(1))
    stamp(3, 3)
    a(f"v_lshrrev_b32 v{t2}, 4, v0")
    a(f"v_lshlrev_b32 v{vBi}, 4, v{t2}")
    for s_, size, p in ((sBs, 192, 8), (sO, OB, 10)):
        a(f"s_mov_b32 s{s_}, s{p}")
        a(f"s_and_b32 s{s_+1}, s{p+1}, 0xffff")
        a(f"s_mov_b32 s{s_+2}, {size}")
        a(f"s_mov_b32 s{s_+3}, 0x20000")
    vbt = vAcc
    run(w_dma(1))
    for p in range(3):
        e.vmem("BI", f"buffer_load_dwordx4 {q4(vbt+4*p)}, v{vBi}, s[{sBs}:{sBs+3}], 0 offen offset:{64*p}")
    a(f"v_and_b32 v{t3}, 15, v0")
    a(f"v_mul_u32_u24 v{t4}, 384, v{t3}")
    a(f"v_add_u32 v{vO}, v{t4}, v{vBi}")
    for b in range(2):
        a(f"v_add_u32 v{t4}, {1-b}, v{t3}")
        a(f"v_mul_u32_u24 v{t5}, 192, v{t4}")
        a(f"v_add_u32 v{t5}, v{t5}, v{vBi}")
        a(f"v_lshlrev_b32 v{t4}, 3, v{t4}")
        a(f"v_and_b32 v{t4}, 32, v{t4}")
        a(f"v_xor_b32 v{t5}, v{t5}, v{t4}")
        a(f"v_add_u32 v{vB+b}, s{s_xb}, v{t5}")
    if opt.get("stpat") == "p192":
        for i in range(3):
            a(f"v_add_u32 v{t4}, {64*i}, v0")
            a(f"v_mul_u32_u24 v{t5}, 5462, v{t4}")
            a(f"v_lshrrev_b32 v{t5}, 16, v{t5}")
            a(f"v_mul_u32_u24 v{t1}, 12, v{t5}")
            a(f"v_sub_u32 v{t1}, v{t4}, v{t1}")
            a(f"v_mul_u32_u24 v{t5}, 384, v{t5}")
            a(f"v_lshlrev_b32 v{t1}, 4, v{t1}")
            a(f"v_add_u32 v{vO3+i}, v{t5}, v{t1}")
    run(w_dma(2))
    a(f"v_and_b32 v{t4}, 1, v{t2}")
    a(f"v_mul_u32_u24 v{t4}, 3080, v{t4}")
    a(f"v_lshrrev_b32 v{t5}, 1, v{t2}")
    a(f"v_mul_u32_u24 v{t5}, 1536, v{t5}")
    a(f"v_add_u32 v{t4}, v{t4}, v{t5}")
    a(f"v_lshrrev_b32 v{t5}, 2, v{t3}")
    a(f"v_mul_u32_u24 v{t5}, 192, v{t5}")
    a(f"v_add_u32 v{t4}, v{t4}, v{t5}")
    a(f"v_and_b32 v{t5}, 3, v{t3}")
    a(f"v_lshlrev_b32 v{t5}, 4, v{t5}")
    a(f"v_add_u32 v{vW}, v{t4}, v{t5}")
    a(f"v_add_u32 v{vW+1}, {6*CH}, v{vW}")
    a(f"s_lshl1_add_u32 s{s_t0}, s{s_m0}, s{s_py}")
    a(f"s_mulk_i32 s{s_t0}, 448")
    a(f"s_lshl_b32 s{s_t1}, s{s_strip}, 5")
    a(f"s_add_u32 s{s_t0}, s{s_t0}, s{s_t1}")
    a(f"s_add_u32 s{s_t0}, s{s_t0}, s{s_px}")
    a(f"s_mul_i32 s{s_or}, s{s_t0}, 192")
    a(f"s_add_u32 s{s_or+1}, s{s_or}, {OROW2}")
    a(f"s_cmp_lt_u32 s{s_band}, 8")
    a(f"s_cselect_b32 s{s_R}, 13, 12")
    npre = opt.get("npre", 1)
    groups = [("X", 2), ("W", 3), ("W", 4), ("W", 5), ("X", 3), ("X", 4)]
    def grp(gk): return xrow_dma(gk[1]) if gk[0] == "X" else w_dma(gk[1])
    for gk in groups[:npre]: run(grp(gk))
    rest = groups[npre:]
    TCH = opt.get("touch", 0)
    if TCH:
        touch_setup()
        if TCH == 1:
            for i in range(3): touch(i)()
    stamp(2)
    stamp(4, 3)
    e.wait_vm("X0")
    stamp(5, 3)
    for f in f_reads(0): f()
    e.wait_vm("X1")
    stamp(6, 3)
    for f in f_reads(1): f()
    e.wait_vm("BI")
    stamp(7, 3)
    for p in range(3):
        for h in range(2):
            for r in range(4):
                src = vbt + 4*p + (4*h+r)//2
                dst = vBias + 4*(2*p+h) + r
                if r & 1: a(f"v_and_b32 v{dst}, 0xffff0000, v{src}")
                else: a(f"v_lshlrev_b32 v{dst}, 16, v{src}")
    free = list(range(NQ))
    def take(): return vAcc + 4*free.pop(0)
    def give(r): free.append((r - vAcc)//4)
    acc = [[take() for t in range(6)] for tile in range(2)]
    LAG = opt.get("lag", 5)
    def rd_frag(f):
        q, t = divmod(f, 6); p, h = divmod(t, 2)
        for half in range(2):
            off = (q % 6)*CH + half*768 + 64*p + 8*h
            e.lds(f"R{f}", f"ds_read_b64_tr_b16 {whalf(f, half)}, v{vW + q//6} offset:{off}")
    def mf(d, f, bfr, c):
        a(f"v_mfma_f32_16x16x32_bf16 {q4(d)}, {wfrag(f)}, {bfr}, {q4(c)}")
    extra = {}
    def at(n, L): extra.setdefault(n, []).extend(L)
    pos = 0
    step = opt.get("pace", 2)
    for gk in rest:
        L = grp(gk)
        at(pos, [L[0]]); pos += 1
        for f in L[1:]:
            at(pos, [f]); pos += step
        pos -= step - 1 if gk[0] == "X" else 0
    if TCH == 2:
        for i in range(3):
            at(pos, [touch(i)]); pos += step
    endpos = pos
    at(24, [lambda: e.wait_vm("X2")])
    for i, f in enumerate(f_reads(2)): at(25+i, [f])
    at(34, [lambda: e.wait_lg("F2")])
    at(56, [lambda: e.wait_vm("X3")])
    for i, f in enumerate(f_reads(3)): at(57+i, [f])
    at(68, [lambda: e.wait_lg("F3")])
    def sched_dma(base, r):
        L = xrow_dma(r)
        at(base, [L[0]])
        for k in range(4): at(base+1+k*step, [L[1+k]])
        at(base+1+3*step, [L[5]])
    late = []
    if not opt.get("nodma"):
        b0 = max(endpos + 1, 44)
        for r_ in (5, 6, 7, 8):
            if r_ < 8 and b0 + 1 + 3*step < 72:
                sched_dma(b0, r_); b0 += 2 + 3*step
            else:
                late.append(r_)
    if PM == 4:
        a("s_waitcnt vmcnt(0)")
        a("s_barrier")
        a("s_mov_b32 s69, 0")
        stamp(1, 4)
        e.lab("L_rep")
    def rd_half(f, half):
        q, t = divmod(f, 6); p, h = divmod(t, 2)
        off = (q % 6)*CH + half*768 + 64*p + 8*h
        e.lds(f"R{f}", f"ds_read_b64_tr_b16 {whalf(f, half)}, v{vW + q//6} offset:{off}")
    def stage_gate(n):
        bs = opt.get("bstep", 12)
        if n < 72 and n % bs == 0:
            e.wait_vm(f"W{(n + bs - 1)//12}")
            a("s_barrier")
            if n == 0: stamp(3)
            stamp(1 + n//12, 2)
    for n in range(LAG):
        stage_gate(n)
        rd_frag(n)
    for m in range(72):
        n = m + LAG
        q, t = divmod(m, 6); aa, b, ks = qabk(q)
        if m == 0: e.wait_lg("F1")
        e.wait_lg(f"R{m}")
        if m == 0: stamp(4)
        ex = list(extra.get(m, []))
        for tile in range(2):
            row = tile + (1 - aa)
            c = (vBias + 4*t) if q == 0 else acc[tile][t]
            mf(acc[tile][t], m, Ffrag(row, b, ks), c)
            if tile == 0: stage_gate(n)
            if n < 72: rd_half(n, tile)
            if tile == 0 and len(ex) > 1: ex.pop(0)()
        for f in ex: f()
    if PM == 4:
        a("s_cmp_eq_u32 s69, 0")
        a("s_cbranch_scc0 L_rep_done")
        stamp(2, 4)
        a("s_mov_b32 s69, 1")
        a("s_branch L_rep")
        e.lab("L_rep_done")
        stamp(3, 4)
    stamp(5); stamp(7, 2); cstamp(0)
    pkfree = [vPk + 4*i for i in range(NPK)]
    def epi_ops(accq, p, tile):
        A, B = accq
        box = {}
        def c0():
            if "pk" not in box: box["pk"] = pkfree.pop(0)
            a(f"v_cvt_pk_bf16_f32 v{box['pk']}, v{A}, v{A+1}")
        def c1(): a(f"v_cvt_pk_bf16_f32 v{box['pk']+1}, v{A+2}, v{A+3}"); give(A)
        def c2(): a(f"v_cvt_pk_bf16_f32 v{box['pk']+2}, v{B}, v{B+1}")
        def c3(): a(f"v_cvt_pk_bf16_f32 v{box['pk']+3}, v{B+2}, v{B+3}"); give(B)
        def st():
            off = f" offset:{64*p}" if p else ""
            fl = (" " + stf) if stf else ""
            pk = box["pk"]
            if opt.get("stpat") == "p192":
                e.vmem("ST", f"buffer_store_dwordx4 {q4(pk)}, v{vO3+p}, s[{sO}:{sO+3}], s{s_or + tile % 4} offen{fl}")
            elif not opt.get("nost"):
                e.vmem("ST", f"buffer_store_dwordx4 {q4(pk)}, v{vO}, s[{sO}:{sO+3}], s{s_or + tile % 4} offen{off}{fl}")
            pkfree.append(pk)
        return [c0, c1], [c2, c3], st
    carry = []
    for tile in range(2):
        for p in range(3):
            c01, c23, st = epi_ops((acc[tile][2*p], acc[tile][2*p+1]), p, tile)
            carry += c01 + c23 + [st]
    def steady(i, carry_sched):
        ex = {}
        def put(n, f): ex.setdefault(n, []).append(f)
        for n, L in carry_sched.items():
            for f in L: put(n, f)
        put(1, lambda: a(f"s_add_u32 s{s_or + i % 4}, s{s_or + (i-1) % 4}, {OROW2}"))
        r = i + 2
        if i == 2 and late:
            p0 = 0
            for r_ in late:
                L = xrow_dma(r_)
                put(p0, L[0])
                for k in range(4): put(p0 + 1 + 3*k, L[1+k])
                put(p0 + 10, L[5])
                p0 += 12
            assert p0 <= 40
        if r <= 13:
            o = 16 if i == 2 else 0
            if (not opt.get("nodma") or r < NS) and not opt.get("nowait"): put(2 + o, lambda: e.wait_vm(f"X{r}"))
            if not opt.get("nords"):
                for k, f in enumerate(f_reads(r)): put(3 + o + 2*k + (0 if k < 2 else 4), f)
                put(40, lambda: e.wait_lg(f"F{r}"))
            if r + NS <= 13 and not opt.get("nodma"):
                L = xrow_dma(r + NS)
                put(40, L[0])
                for k in range(4): put(42 + 4*k, L[1+k])
                put(54, L[5])
        accs = []
        nxt = {}
        for t in range(6):
            d = take(); accs.append(d)
            for q in range(12):
                n = 12*t + q
                aa, b, ks = qabk(q)
                row = i + (1 - aa)
                c = (vBias + 4*t) if q == 0 else d
                mf(d, q*6 + t, Ffrag(row, b, ks), c)
                for f in ex.get(n, []): f()
            if t % 2 == 1:
                p = t//2
                c01, c23, st = epi_ops((accs[t-1], accs[t]), p, i)
                base = 12*t + 12
                tgt = [(base + 0, c01[0]), (base + 1, c01[1]), (base + 8, c23[0]), (base + 9, c23[1]), (base + 10, st)]
                for n_, f in tgt:
                    if n_ < 72: put(n_, f)
                    else: nxt.setdefault(n_ - 72, []).append(f)
        return nxt
    cs = {}
    n = 0
    for f in carry:
        cs.setdefault(n, []).append(f); n += 2
    def tail(em_carry):
        a("s_nop 7")
        for n in sorted(em_carry):
            for f in em_carry[n]: f()
    def prof_dump(em):
        if not T0: return
        b = em.a
        b("s_waitcnt vmcnt(0)")
        if PM == 1: b(f"s_memrealtime s[{70+14}:{71+14}]")
        b("s_waitcnt lgkmcnt(0)")
        b("s_load_dwordx2 s[4:5], s[0:1], 40")
        b("s_waitcnt lgkmcnt(0)")
        b("s_mov_b32 s8, s4"); b("s_and_b32 s9, s5, 0xffff"); b("s_mov_b32 s10, 0x10000000"); b("s_mov_b32 s11, 0x20000")
        b("v_mov_b32 v1, 0")
        for i in range(8): b(f"v_writelane_b32 v1, s{70+2*i}, {i}")
        b(f"v_writelane_b32 v1, s{s_R}, 14")
        b("s_sub_u32 s86, s88, s86")
        b(f"v_writelane_b32 v1, s86, 13")
        b("s_getreg_b32 s87, hwreg(HW_REG_XCC_ID)")
        b(f"v_writelane_b32 v1, s87, 12")
        b(f"s_lshl_b32 s6, s2, 2"); b(f"s_add_u32 s6, s6, s{s_w}"); b("s_lshl_b32 s6, s6, 6")
        b("v_lshlrev_b32 v3, 2, v0")
        b("v_cmp_gt_u32 vcc, 16, v0")
        b("s_and_saveexec_b64 s[12:13], vcc")
        b("buffer_store_dword v1, v3, s[8:11], s6 offen")
        b("s_waitcnt vmcnt(0)")
    nxt = cs
    saved = None
    for i in range(2, 13):
        if i == 12:
            a(f"s_cmp_eq_u32 s{s_R}, 12")
            a("s_cbranch_scc1 L_tail12")
            saved = (e.clone(), dict(nxt))
        nxt = steady(i, nxt)
    stamp(6); cstamp(1)
    tail(nxt)
    prof_dump(e)
    a("s_endpgm")
    em0, nx0 = saved
    L_main = e.L
    e.L = []; e.vm = em0.vm; e.lg = em0.lg; e.vm_done = em0.vm_done; e.lg_done = em0.lg_done
    e.lab("L_tail12")
    stamp(6); cstamp(1)
    tail(nx0)
    prof_dump(e)
    e.lab("L_end")
    a("s_endpgm")
    e.lab("L_codeend")
    body = "\n".join(L_main + e.L)
    hdr = f"""; ConvTranspose2d(k=4, s=2, p=1), NHWC bf16, 224x224x96 -> 448x448x96  (generated by my own script)
; @launch grid=(256,1,1) block=(256,1,1) lds={LDS}
.amdgcn_target "amdgcn-amd-amdhsa--gfx950"
.text
.globl {KNAME}
.p2align 8
.type {KNAME},@function
{KNAME}:
{body}
.section .rodata,"a"
.p2align 6
.amdhsa_kernel {KNAME}
  .amdhsa_next_free_vgpr 512
  .amdhsa_next_free_sgpr 96
  .amdhsa_accum_offset 256
  .amdhsa_group_segment_fixed_size 0
  .amdhsa_kernarg_size 48
  .amdhsa_user_sgpr_count 2
  .amdhsa_user_sgpr_kernarg_segment_ptr 1
  .amdhsa_system_sgpr_workgroup_id_x 1
.end_amdhsa_kernel
"""
    return hdr

if __name__ == "__main__":
    import mk
    out = sys.argv[1] if len(sys.argv) > 1 else "k2.s"
    opt = {}
    for x in sys.argv[2:]:
        k, v = x.split("=")
        opt[k] = int(v) if v.lstrip("-").isdigit() else v
    open(out, "w").write(gen(opt))
    print(mk.build(out))
```

```python
import sys
KNAME = "standalone__transposed_strided__vision_kernel"
XB = 9633792; WB = 294912; OB = 38535168
XROW = 224*192
OROW2 = 2*448*192
CH = 6160
WREG = 12*CH
XBASE = 73984
NS = 5
SLOT = 4096
LDS = XBASE + 4*NS*SLOT

class Em:
    def __init__(s):
        s.L = []; s.vm = []; s.lg = []; s.vm_done = 0; s.lg_done = 0
    def clone(s):
        e = Em(); e.vm = list(s.vm); e.lg = list(s.lg); e.vm_done = s.vm_done; e.lg_done = s.lg_done
        return e
    def a(s, t): s.L.append("    " + t)
    def lab(s, t): s.L.append(t + ":")
    def vmem(s, tag, t): s.a(t); s.vm.append(tag)
    def lds(s, tag, t): s.a(t); s.lg.append(tag)
    def wait_vm(s, tag):
        idx = max(i for i, x in enumerate(s.vm) if x == tag) + 1
        if idx <= s.vm_done: return
        n = len(s.vm) - idx
        assert n <= 63
        s.a(f"s_waitcnt vmcnt({n})"); s.vm_done = idx
    def wait_lg(s, tag):
        idx = max(i for i, x in enumerate(s.lg) if x == tag) + 1
        if idx <= s.lg_done: return
        n = len(s.lg) - idx
        assert n <= 15, n
        s.a(f"s_waitcnt lgkmcnt({n})"); s.lg_done = idx

def gen(opt):
    stf = opt.get("stflags", "sc1")
    T0 = opt.get("prof", False)
    XMASK = opt.get("xmask", 1)
    PREF = opt.get("pref", 1)
    e = Em(); a = e.a
    V = 0
    def alloc(n, al=1):
        nonlocal V
        V = (V + al - 1)//al*al
        r = V; V += n; return r
    v_tid = alloc(1)
    vT = alloc(5)
    vPf = alloc(1)
    vX = alloc(4)
    vWd = alloc(3)
    vB = alloc(2)
    vW = alloc(2)
    vO = alloc(1)
    vBi = alloc(1)
    vO3 = alloc(3)
    vTch = alloc(1)
    vF = [alloc(24, 4) for _ in range(3)]
    NQ = 14
    vAcc = alloc(4*NQ, 4)
    vBias = alloc(24, 4)
    NPK = 4
    vPk = alloc(4*NPK, 4)
    vWv = alloc(32, 4)
    assert V <= 256, V
    def wfrag(f):
        return (f"a[{4*f}:{4*f+3}]" if f < 64 else f"v[{vWv+4*(f-64)}:{vWv+4*(f-64)+3}]")
    def whalf(f, h):
        if f < 64: return f"a[{4*f+2*h}:{4*f+2*h+1}]"
        r = vWv+4*(f-64)+2*h
        return f"v[{r}:{r+1}]"
    def Ffrag(row, b, ks):
        r = vF[row % 3] + 4*(b*3+ks)
        return f"v[{r}:{r+3}]"
    def q4(r): return f"v[{r}:{r+3}]"
    sX, sX2, sW, sBs, sO = 12, 16, 20, 24, 28
    s_w, s_wh, s_o, s_px, s_py, s_strip, s_band, s_m0, s_R = 32, 33, 34, 35, 36, 37, 38, 39, 40
    s_t0, s_t1, s_t2, s_t3 = 41, 42, 43, 44
    s_xrow, s_iy, s_xb, s_pb, s_wmb = 45, 46, 47, 48, 49
    s_wo = 50
    s_or = 56
    s_mk = 60
    s_pc = 66
    PM = opt.get("pm", 1)
    def stamp(i, pm=1):
        if T0 and pm == PM: a(f"s_memrealtime s[{70+2*i}:{71+2*i}]")
    def cstamp(i):
        if T0: a(f"s_memtime s[{86+2*i}:{87+2*i}]")
    def qabk(q):
        aa = 1 - q//6; b = (q % 6)//3; ks = q % 3
        return aa, b, ks
    def wconst(q):
        aa, b, ks = qabk(q)
        return (8*aa + 2*b)*18432 + ks*6144
    t1, t2, t3, t4, t5 = [vT+i for i in range(5)]
    stamp(0); stamp(0, 2); stamp(0, 3); stamp(0, 4)
    a("s_cmp_ge_u32 s2, 256")
    a("s_cbranch_scc1 L_end")
    a("s_load_dwordx4 s[4:7], s[0:1], 0")
    a("s_load_dwordx4 s[8:11], s[0:1], 16")
    if PREF:
        a(f"s_getpc_b64 s[{s_pc}:{s_pc+1}]")
        e.lab("L_pc")
        a(f"v_lshlrev_b32 v{t1}, 6, v0")
        a(f"v_min_u32 v{t1}, L_codeend-L_pc-4, v{t1}")
        a(f"v_mov_b32 v{t3}, s{s_pc+1}")
        a(f"v_add_co_u32 v{t2}, vcc, s{s_pc}, v{t1}")
    a(f"v_lshrrev_b32 v{t4}, 6, v0")
    a(f"v_and_b32 v0, 63, v0")
    if PREF:
        a(f"v_addc_co_u32 v{t3}, vcc, 0, v{t3}, vcc")
    a(f"v_readfirstlane_b32 s{s_w}, v{t4}")
    if PREF:
        assert t2 % 2 == 0
        e.vmem("PF", f"global_load_dword v{vPf}, v[{t2}:{t3}], off")
    a(f"s_and_b32 s{s_t0}, s2, 7")
    a(f"s_lshr_b32 s{s_t1}, s2, 5")
    a(f"s_lshl3_add_u32 s{s_t1}, s{s_t1}, s{s_t0}" if False else f"s_lshl_b32 s{s_t1}, s{s_t1}, 3")
    a(f"s_add_u32 s{s_t1}, s{s_t1}, s{s_t0}")
    a(f"s_cmp_ge_u32 s{s_t1}, 63")
    a("s_cbranch_scc1 L_end")
    a(f"s_bfe_u32 s{s_px}, s2, 0x10003")
    a(f"s_bfe_u32 s{s_py}, s2, 0x10004")
    a(f"s_lshl2_add_u32 s{s_t1}, s{s_t1}, s{s_w}")
    a(f"s_mul_i32 s{s_band}, s{s_t1}, 4682")
    a(f"s_lshr_b32 s{s_band}, s{s_band}, 16")
    a(f"s_mul_i32 s{s_t0}, s{s_band}, 14")
    a(f"s_sub_u32 s{s_strip}, s{s_t1}, s{s_t0}")
    a(f"s_min_u32 s{s_t0}, s{s_band}, 8")
    a(f"s_mul_i32 s{s_m0}, s{s_band}, 12")
    a(f"s_add_u32 s{s_m0}, s{s_m0}, s{s_t0}")
    a(f"s_add_u32 s{s_iy}, s{s_m0}, s{s_py}")
    a(f"s_sub_u32 s{s_iy}, s{s_iy}, 1")
    a(f"s_mul_i32 s{s_xrow}, s{s_iy}, {XROW}")
    a(f"s_lshl4_add_u32 s{s_t0}, s{s_strip}, s{s_px}")
    a(f"s_sub_u32 s{s_t1}, s{s_t0}, 1")
    a(f"s_mulk_i32 s{s_t1}, 192")
    a(f"s_cmp_eq_u32 s{s_t0}, 0")
    a(f"s_cselect_b32 s{s_t2}, 12, 0")
    a(f"s_cmpk_gt_u32 s{s_t0}, 208")
    a(f"s_cselect_b32 s{s_t3}, 0, 12")
    a(f"s_mov_b32 s{s_mk}, 0")
    a(f"s_mov_b32 s{s_mk+1}, 0xffff0000")
    a(f"s_mov_b32 s{s_mk+2}, -1")
    a(f"s_mov_b32 s{s_mk+3}, 0")
    a(f"s_mov_b32 s{s_mk+4}, 0xffff0000")
    a(f"s_mov_b32 s{s_mk+5}, -1")
    a(f"v_lshlrev_b32 v{vWd}, 4, v0")
    a(f"v_xor_b32 v{t1}, 32, v{vWd}")
    a(f"v_add_u32 v{t1}, s{s_t1}, v{t1}")
    a(f"v_add_u32 v{vX+3}, s{s_t1}, v{vWd}")
    a(f"v_bfrev_b32 v{t3}, 1")
    a(f"v_cmp_gt_u32 vcc, s{s_t2}, v0")
    a(f"v_cndmask_b32 v{vX}, v{vX+3}, v{t1}, s[{s_mk}:{s_mk+1}]")
    a(f"v_cndmask_b32 v{vX+1}, v{vX+3}, v{t1}, s[{s_mk+2}:{s_mk+3}]")
    a(f"v_cndmask_b32 v{vX}, v{vX}, v{t3}, vcc")
    a(f"v_cmp_le_u32 vcc, s{s_t3}, v0")
    a(f"v_cndmask_b32 v{vX+2}, v{vX+3}, v{t1}, s[{s_mk+4}:{s_mk+5}]")
    a(f"v_lshrrev_b32 v{t2}, 5, v0")
    a(f"v_cndmask_b32 v{vX+3}, v{vX+3}, v{t3}, vcc")
    a(f"v_mul_u32_u24 v{t2}, 1536, v{t2}")
    a(f"v_add_u32 v{vWd+1}, v{vWd}, v{t2}")
    a(f"v_add_u32 v{vWd+2}, 1536, v{vWd}")
    a(f"s_lshr_b32 s{s_wh}, s{s_w}, 1")
    a(f"s_and_b32 s{s_o}, s{s_w}, 1")
    a(f"s_lshl2_add_u32 s{s_t0}, s{s_py}, s{s_px}")
    a(f"s_sub_u32 s{s_t0}, 5, s{s_t0}")
    a(f"s_mul_i32 s{s_pb}, s{s_t0}, 18432")
    a(f"s_mul_i32 s{s_t0}, s{s_o}, 1536")
    a(f"s_add_u32 s{s_pb}, s{s_pb}, s{s_t0}")
    a(f"s_mul_i32 s{s_t2}, s{s_o}, 3080")
    a(f"s_mul_i32 s{s_t3}, s{s_wh}, {CH}")
    a(f"s_add_u32 s{s_wmb}, s{s_t2}, s{s_t3}")
    a(f"s_mul_i32 s{s_xb}, s{s_w}, {NS*SLOT}")
    a(f"s_add_u32 s{s_xb}, s{s_xb}, {XBASE}")
    def wo_calc(j):
        c0, c1 = wconst(2*j), wconst(2*j+1)
        a(f"s_cmp_eq_u32 s{s_wh}, 0")
        a(f"s_mov_b32 s{s_t0}, {c1}")
        a(f"s_cselect_b32 s{s_t0}, {c0}, s{s_t0}")
        a(f"s_add_u32 s{s_wo+j}, s{s_t0}, s{s_pb}")
    wo_calc(0)
    for s_, size in ((sX, XB), (sW, WB)):
        a(f"s_mov_b32 s{s_+2}, {size}")
        a(f"s_mov_b32 s{s_+3}, 0x20000")
    a(f"s_mov_b32 s{sX2+3}, 0x20000")
    a("s_waitcnt lgkmcnt(0)")
    stamp(1); stamp(1, 3)
    for s_, p in ((sX2, 4), (sW, 6), (sX, 4)):
        a(f"s_mov_b32 s{s_}, s{p}")
        a(f"s_and_b32 s{s_+1}, s{p+1}, 0xffff")

    def xrow_dma(r):
        L = []
        chk = r in (0, 12, 13)
        srd = sX2 if chk else sX
        def pre():
            if chk:
                a(f"s_cmp_lt_u32 s{s_iy}, 224")
                a(f"s_cselect_b32 s{sX2+2}, {XB}, 0")
            a(f"s_add_u32 m0, s{s_xb}, {(r % NS)*SLOT}")
        L.append(pre)
        for k in range(4):
            def ld(k=k):
                off = f" offset:{1024*k}" if k else ""
                if k == 3 and XMASK: a("s_mov_b64 exec, 0xfff")
                e.vmem(f"X{r}", f"buffer_load_dwordx4 v{vX+k}, s[{srd}:{srd+3}], s{s_xrow} offen{off} lds")
                if k == 3 and XMASK: a("s_mov_b64 exec, -1")
            L.append(ld)
        def post():
            if opt.get("samerow") and r >= 4:
                a(f"s_mov_b32 s{s_xrow}, {XROW*5}")
            else:
                a(f"s_add_u32 s{s_xrow}, s{s_xrow}, {XROW}")
            a(f"s_add_u32 s{s_iy}, s{s_iy}, 1")
        L.append(post)
        return L
    def w_dma(j):
        L = []
        def pre():
            if j > 0: wo_calc(j)
            a(f"s_add_u32 m0, s{s_wmb}, {2*j*CH}")
        L.append(pre)
        for k in range(3):
            def ld(k=k):
                off = f" offset:{1024*k}" if k else ""
                e.vmem(f"W{j}", f"buffer_load_dwordx4 v{vWd+k}, s[{sW}:{sW+3}], s{s_wo+j} offen{off} lds")
            L.append(ld)
        return L
    def run(L):
        for i, f in enumerate(L):
            f()
            if i == 0: a("s_nop 0")
    def f_reads(r):
        L = []
        for b in range(2):
            for ks in range(3):
                def rd(b=b, ks=ks):
                    e.lds(f"F{r}", f"ds_read_b128 {Ffrag(r, b, ks)}, v{vB+b} offset:{(r % NS)*SLOT + 64*ks}")
                L.append(rd)
        return L
    s_tch = 68
    def touch_setup():
        a(f"s_lshl_b32 s{s_t0}, s{s_strip}, 4")
        a(f"s_sub_i32 s{s_t0}, s{s_t0}, 1")
        a(f"s_max_i32 s{s_t0}, s{s_t0}, 0")
        a(f"s_mulk_i32 s{s_t0}, 192")
        a(f"v_lshlrev_b32 v{vTch}, 6, v0")
        a(f"v_add_u32 v{vTch}, s{s_t0}, v{vTch}")
        a(f"s_lshl1_add_u32 s{s_t0}, s{s_py}, s{s_px}")
        a(f"s_add_u32 s{s_t0}, s{s_t0}, s{s_m0}")
        a(f"s_add_u32 s{s_tch}, s{s_t0}, {opt.get('tch0', 4)}")
    def touch(i):
        def f():
            a(f"s_min_u32 s{s_tch+1}, s{s_tch}, 223")
            a(f"s_mul_i32 s{s_tch+1}, s{s_tch+1}, {XROW}")
            e.vmem("TC", f"buffer_load_dword v{vPf}, v{vTch}, s[{sX}:{sX+3}], s{s_tch+1} offen")
            a(f"s_add_u32 s{s_tch}, s{s_tch}, 4")
        return f
    run(xrow_dma(0))
    stamp(2, 3)
    run(w_dma(0))
    run(xrow_dma(1))
    stamp(3, 3)
    a(f"v_lshrrev_b32 v{t2}, 4, v0")
    a(f"v_lshlrev_b32 v{vBi}, 4, v{t2}")
    for s_, size, p in ((sBs, 192, 8), (sO, OB, 10)):
        a(f"s_mov_b32 s{s_}, s{p}")
        a(f"s_and_b32 s{s_+1}, s{p+1}, 0xffff")
        a(f"s_mov_b32 s{s_+2}, {size}")
        a(f"s_mov_b32 s{s_+3}, 0x20000")
    vbt = vAcc
    run(w_dma(1))
    for p in range(3):
        e.vmem("BI", f"buffer_load_dwordx4 {q4(vbt+4*p)}, v{vBi}, s[{sBs}:{sBs+3}], 0 offen offset:{64*p}")
    a(f"v_and_b32 v{t3}, 15, v0")
    a(f"v_mul_u32_u24 v{t4}, 384, v{t3}")
    a(f"v_add_u32 v{vO}, v{t4}, v{vBi}")
    for b in range(2):
        a(f"v_add_u32 v{t4}, {1-b}, v{t3}")
        a(f"v_mul_u32_u24 v{t5}, 192, v{t4}")
        a(f"v_add_u32 v{t5}, v{t5}, v{vBi}")
        a(f"v_lshlrev_b32 v{t4}, 3, v{t4}")
        a(f"v_and_b32 v{t4}, 32, v{t4}")
        a(f"v_xor_b32 v{t5}, v{t5}, v{t4}")
        a(f"v_add_u32 v{vB+b}, s{s_xb}, v{t5}")
    if opt.get("stpat") == "p192":
        for i in range(3):
            a(f"v_add_u32 v{t4}, {64*i}, v0")
            a(f"v_mul_u32_u24 v{t5}, 5462, v{t4}")
            a(f"v_lshrrev_b32 v{t5}, 16, v{t5}")
            a(f"v_mul_u32_u24 v{t1}, 12, v{t5}")
            a(f"v_sub_u32 v{t1}, v{t4}, v{t1}")
            a(f"v_mul_u32_u24 v{t5}, 384, v{t5}")
            a(f"v_lshlrev_b32 v{t1}, 4, v{t1}")
            a(f"v_add_u32 v{vO3+i}, v{t5}, v{t1}")
    if opt.get("stpat") == "x3":
        a(f"v_mul_u32_u24 v{t4}, 384, v{t2}")
        a(f"v_mul_u32_u24 v{t5}, 12, v{t3}")
        a(f"v_add_u32 v{vO3}, v{t4}, v{t5}")
        a(f"v_add_u32 v{vO3+1}, 4608, v{vO3}")
    run(w_dma(2))
    a(f"v_and_b32 v{t4}, 1, v{t2}")
    a(f"v_mul_u32_u24 v{t4}, 3080, v{t4}")
    a(f"v_lshrrev_b32 v{t5}, 1, v{t2}")
    a(f"v_mul_u32_u24 v{t5}, 1536, v{t5}")
    a(f"v_add_u32 v{t4}, v{t4}, v{t5}")
    a(f"v_lshrrev_b32 v{t5}, 2, v{t3}")
    a(f"v_mul_u32_u24 v{t5}, 192, v{t5}")
    a(f"v_add_u32 v{t4}, v{t4}, v{t5}")
    a(f"v_and_b32 v{t5}, 3, v{t3}")
    a(f"v_lshlrev_b32 v{t5}, 4, v{t5}")
    a(f"v_add_u32 v{vW}, v{t4}, v{t5}")
    a(f"v_add_u32 v{vW+1}, {6*CH}, v{vW}")
    a(f"s_lshl1_add_u32 s{s_t0}, s{s_m0}, s{s_py}")
    a(f"s_mulk_i32 s{s_t0}, 448")
    a(f"s_lshl_b32 s{s_t1}, s{s_strip}, 5")
    a(f"s_add_u32 s{s_t0}, s{s_t0}, s{s_t1}")
    a(f"s_add_u32 s{s_t0}, s{s_t0}, s{s_px}")
    a(f"s_mul_i32 s{s_or}, s{s_t0}, 192")
    a(f"s_add_u32 s{s_or+1}, s{s_or}, {OROW2}")
    a(f"s_cmp_lt_u32 s{s_band}, 8")
    a(f"s_cselect_b32 s{s_R}, 13, 12")
    npre = opt.get("npre", 1)
    groups = [("X", 2), ("W", 3), ("W", 4), ("W", 5), ("X", 3), ("X", 4)]
    def grp(gk): return xrow_dma(gk[1]) if gk[0] == "X" else w_dma(gk[1])
    for gk in groups[:npre]: run(grp(gk))
    rest = groups[npre:]
    TCH = opt.get("touch", 0)
    if TCH:
        touch_setup()
        if TCH == 1:
            for i in range(3): touch(i)()
    stamp(2)
    stamp(4, 3)
    e.wait_vm("X0")
    stamp(5, 3)
    for f in f_reads(0): f()
    e.wait_vm("X1")
    stamp(6, 3)
    for f in f_reads(1): f()
    e.wait_vm("BI")
    stamp(7, 3)
    for p in range(3):
        for h in range(2):
            for r in range(4):
                src = vbt + 4*p + (4*h+r)//2
                dst = vBias + 4*(2*p+h) + r
                if r & 1: a(f"v_and_b32 v{dst}, 0xffff0000, v{src}")
                else: a(f"v_lshlrev_b32 v{dst}, 16, v{src}")
    free = list(range(NQ))
    def take(): return vAcc + 4*free.pop(0)
    def give(r): free.append((r - vAcc)//4)
    acc = [[take() for t in range(6)] for tile in range(2)]
    LAG = opt.get("lag", 5)
    def rd_frag(f):
        q, t = divmod(f, 6); p, h = divmod(t, 2)
        for half in range(2):
            off = (q % 6)*CH + half*768 + 64*p + 8*h
            e.lds(f"R{f}", f"ds_read_b64_tr_b16 {whalf(f, half)}, v{vW + q//6} offset:{off}")
    def mf(d, f, bfr, c):
        a(f"v_mfma_f32_16x16x32_bf16 {q4(d)}, {wfrag(f)}, {bfr}, {q4(c)}")
    extra = {}
    def at(n, L): extra.setdefault(n, []).extend(L)
    pos = 0
    step = opt.get("pace", 2)
    for gk in rest:
        L = grp(gk)
        at(pos, [L[0]]); pos += 1
        for f in L[1:]:
            at(pos, [f]); pos += step
        pos -= step - 1 if gk[0] == "X" else 0
    if TCH == 2:
        for i in range(3):
            at(pos, [touch(i)]); pos += step
    endpos = pos
    at(24, [lambda: e.wait_vm("X2")])
    for i, f in enumerate(f_reads(2)): at(25+i, [f])
    at(34, [lambda: e.wait_lg("F2")])
    at(56, [lambda: e.wait_vm("X3")])
    for i, f in enumerate(f_reads(3)): at(57+i, [f])
    at(68, [lambda: e.wait_lg("F3")])
    def sched_dma(base, r):
        L = xrow_dma(r)
        at(base, [L[0]])
        for k in range(4): at(base+1+k*step, [L[1+k]])
        at(base+1+3*step, [L[5]])
    late = []
    if not opt.get("nodma"):
        b0 = max(endpos + 1, 44)
        for r_ in (5, 6, 7, 8):
            if r_ < 8 and b0 + 1 + 3*step < 72:
                sched_dma(b0, r_); b0 += 2 + 3*step
            else:
                late.append(r_)
    if PM == 4:
        a("s_waitcnt vmcnt(0)")
        a("s_barrier")
        a("s_mov_b32 s69, 0")
        stamp(1, 4)
        e.lab("L_rep")
    def rd_half(f, half):
        q, t = divmod(f, 6); p, h = divmod(t, 2)
        off = (q % 6)*CH + half*768 + 64*p + 8*h
        e.lds(f"R{f}", f"ds_read_b64_tr_b16 {whalf(f, half)}, v{vW + q//6} offset:{off}")
    def stage_gate(n):
        bs = opt.get("bstep", 12)
        if n < 72 and n % bs == 0:
            e.wait_vm(f"W{(n + bs - 1)//12}")
            a("s_barrier")
            if n == 0: stamp(3)
            stamp(1 + n//12, 2)
    for n in range(LAG):
        stage_gate(n)
        rd_frag(n)
    for m in range(72):
        n = m + LAG
        q, t = divmod(m, 6); aa, b, ks = qabk(q)
        if m == 0: e.wait_lg("F1")
        e.wait_lg(f"R{m}")
        if m == 0: stamp(4)
        ex = list(extra.get(m, []))
        for tile in range(2):
            row = tile + (1 - aa)
            c = (vBias + 4*t) if q == 0 else acc[tile][t]
            mf(acc[tile][t], m, Ffrag(row, b, ks), c)
            if tile == 0: stage_gate(n)
            if n < 72: rd_half(n, tile)
            if tile == 0 and len(ex) > 1: ex.pop(0)()
        for f in ex: f()
    if PM == 4:
        a("s_cmp_eq_u32 s69, 0")
        a("s_cbranch_scc0 L_rep_done")
        stamp(2, 4)
        a("s_mov_b32 s69, 1")
        a("s_branch L_rep")
        e.lab("L_rep_done")
        stamp(3, 4)
    stamp(5); stamp(7, 2); cstamp(0)
    pkfree = [vPk + 4*i for i in range(NPK)]
    def epi_ops(accq, p, tile):
        A, B = accq
        box = {}
        def c0():
            if "pk" not in box: box["pk"] = pkfree.pop(0)
            if not opt.get("nocvt"): a(f"v_cvt_pk_bf16_f32 v{box['pk']}, v{A}, v{A+1}")
        cv = (lambda t: None) if opt.get("nocvt") else a
        def c1(): cv(f"v_cvt_pk_bf16_f32 v{box['pk']+1}, v{A+2}, v{A+3}"); give(A)
        def c2(): cv(f"v_cvt_pk_bf16_f32 v{box['pk']+2}, v{B}, v{B+1}")
        def c3(): cv(f"v_cvt_pk_bf16_f32 v{box['pk']+3}, v{B+2}, v{B+3}"); give(B)
        def st():
            off = f" offset:{64*p}" if p else ""
            fl = (" " + stf) if stf else ""
            pk = box["pk"]
            if opt.get("stpat") == "x3":
                for rr in ([0, 1] if p == 0 else [p+1]):
                    e.vmem("ST", f"buffer_store_dwordx3 v[{pk}:{pk+2}], v{vO3}, s[{sO}:{sO+3}], s{s_or + tile % 4} offen offset:{1536*rr if rr < 2 else 3072 + 0*rr}{fl}" if rr < 3 else f"buffer_store_dwordx3 v[{pk}:{pk+2}], v{vO3+1}, s[{sO}:{sO+3}], s{s_or + tile % 4} offen{fl}")
            elif opt.get("stpat") == "p192":
                e.vmem("ST", f"buffer_store_dwordx4 {q4(pk)}, v{vO3+p}, s[{sO}:{sO+3}], s{s_or + tile % 4} offen{fl}")
            elif not opt.get("nost"):
                e.vmem("ST", f"buffer_store_dwordx4 {q4(pk)}, v{vO}, s[{sO}:{sO+3}], s{s_or + tile % 4} offen{off}{fl}")
            pkfree.append(pk)
        return [c0, c1], [c2, c3], st
    carry = []
    for tile in range(2):
        for p in range(3):
            c01, c23, st = epi_ops((acc[tile][2*p], acc[tile][2*p+1]), p, tile)
            carry += c01 + c23 + [st]
    def steady(i, carry_sched):
        ex = {}
        def put(n, f): ex.setdefault(n, []).append(f)
        for n, L in carry_sched.items():
            for f in L: put(n, f)
        put(1, lambda: a(f"s_add_u32 s{s_or + i % 4}, s{s_or + (i-1) % 4}, {OROW2}"))
        r = i + 2
        if i == 2 and late:
            p0 = 0
            for r_ in late:
                L = xrow_dma(r_)
                put(p0, L[0])
                for k in range(4): put(p0 + 1 + 3*k, L[1+k])
                put(p0 + 10, L[5])
                p0 += 12
            assert p0 <= 40
        if r <= 13:
            o = 16 if i == 2 else 0
            if (not opt.get("nodma") or r < NS) and not opt.get("nowait"): put(2 + o, lambda: e.wait_vm(f"X{r}"))
            if not opt.get("nords"):
                rp = [int(x) for x in str(opt.get("rdpos", "3,5,11,13,15,17")).split(",")]
                for k, f in enumerate(f_reads(r)): put(rp[k] + o, f)
                put(opt.get("lgpos", 40) if i > 2 else 40, lambda: e.wait_lg(f"F{r}"))
            if r + NS <= 13 and not opt.get("nodma"):
                L = xrow_dma(r + NS)
                dp = [int(x) for x in str(opt.get("dmapos", "42,46,50,54")).split(",")]
                if i == 2: dp = [42, 46, 50, 54]
                put(dp[0] - 2, L[0])
                for k in range(4): put(dp[k], L[1+k])
                put(dp[3], L[5])
        accs = []
        nxt = {}
        for t in range(6):
            d = take(); accs.append(d)
            for q in range(12):
                n = 12*t + q
                aa, b, ks = qabk(q)
                row = i + (1 - aa)
                c = (vBias + 4*t) if q == 0 else d
                mf(d, q*6 + t, Ffrag(row, b, ks), c)
                for f in ex.get(n, []): f()
            if t % 2 == 1:
                p = t//2
                c01, c23, st = epi_ops((accs[t-1], accs[t]), p, i)
                base = 12*t + 12
                tgt = [(base + 0, c01[0]), (base + 1, c01[1]), (base + 8, c23[0]), (base + 9, c23[1]), (base + 10, st)]
                for n_, f in tgt:
                    if n_ < 72: put(n_, f)
                    else: nxt.setdefault(n_ - 72, []).append(f)
        return nxt
    cs = {}
    n = 0
    for f in carry:
        cs.setdefault(n, []).append(f); n += 2
    def tail(em_carry):
        a("s_nop 7")
        for n in sorted(em_carry):
            for f in em_carry[n]: f()
    def prof_dump(em):
        if not T0: return
        b = em.a
        b("s_waitcnt vmcnt(0)")
        if PM == 1: b(f"s_memrealtime s[{70+14}:{71+14}]")
        b("s_waitcnt lgkmcnt(0)")
        b("s_load_dwordx2 s[4:5], s[0:1], 40")
        b("s_waitcnt lgkmcnt(0)")
        b("s_mov_b32 s8, s4"); b("s_and_b32 s9, s5, 0xffff"); b("s_mov_b32 s10, 0x10000000"); b("s_mov_b32 s11, 0x20000")
        b("v_mov_b32 v1, 0")
        for i in range(8): b(f"v_writelane_b32 v1, s{70+2*i}, {i}")
        b(f"v_writelane_b32 v1, s{s_R}, 14")
        b("s_sub_u32 s86, s88, s86")
        b(f"v_writelane_b32 v1, s86, 13")
        b("s_getreg_b32 s87, hwreg(HW_REG_XCC_ID)")
        b(f"v_writelane_b32 v1, s87, 12")
        b(f"s_lshl_b32 s6, s2, 2"); b(f"s_add_u32 s6, s6, s{s_w}"); b("s_lshl_b32 s6, s6, 6")
        b("v_lshlrev_b32 v3, 2, v0")
        b("v_cmp_gt_u32 vcc, 16, v0")
        b("s_and_saveexec_b64 s[12:13], vcc")
        b("buffer_store_dword v1, v3, s[8:11], s6 offen")
        b("s_waitcnt vmcnt(0)")
    nxt = cs
    saved = None
    for i in range(2, 13):
        if i == 12:
            a(f"s_cmp_eq_u32 s{s_R}, 12")
            a("s_cbranch_scc1 L_tail12")
            saved = (e.clone(), dict(nxt))
        nxt = steady(i, nxt)
    stamp(6); cstamp(1)
    tail(nxt)
    prof_dump(e)
    a("s_endpgm")
    em0, nx0 = saved
    L_main = e.L
    e.L = []; e.vm = em0.vm; e.lg = em0.lg; e.vm_done = em0.vm_done; e.lg_done = em0.lg_done
    e.lab("L_tail12")
    stamp(6); cstamp(1)
    tail(nx0)
    prof_dump(e)
    e.lab("L_end")
    a("s_endpgm")
    e.lab("L_codeend")
    body = "\n".join(L_main + e.L)
    hdr = f"""; ConvTranspose2d(k=4, s=2, p=1), NHWC bf16, 224x224x96 -> 448x448x96  (generated by my own script)
; @launch grid=(256,1,1) block=(256,1,1) lds={LDS}
.amdgcn_target "amdgcn-amd-amdhsa--gfx950"
.text
.globl {KNAME}
.p2align 8
.type {KNAME},@function
{KNAME}:
{body}
.section .rodata,"a"
.p2align 6
.amdhsa_kernel {KNAME}
  .amdhsa_next_free_vgpr 512
  .amdhsa_next_free_sgpr 96
  .amdhsa_accum_offset 256
  .amdhsa_group_segment_fixed_size 0
  .amdhsa_kernarg_size 48
  .amdhsa_user_sgpr_count 2
  .amdhsa_user_sgpr_kernarg_segment_ptr 1
  .amdhsa_system_sgpr_workgroup_id_x 1
.end_amdhsa_kernel
"""
    return hdr

if __name__ == "__main__":
    import mk
    out = sys.argv[1] if len(sys.argv) > 1 else "k2.s"
    opt = {}
    for x in sys.argv[2:]:
        k, v = x.split("=")
        opt[k] = int(v) if v.lstrip("-").isdigit() else v
    open(out, "w").write(gen(opt))
    print(mk.build(out))
```

```python
import sys
KNAME = "standalone__transposed_strided__vision_kernel"
XB = 9633792; WB = 294912; OB = 38535168
XROW = 224*192
OROW2 = 2*448*192
CH = 6160
XBASE = 73984
NS = 5
SLOT = 4096
LDS = XBASE + 4*NS*SLOT

class Em:
    def __init__(s):
        s.L = []; s.vm = []; s.lg = []; s.vm_done = 0; s.lg_done = 0
    def clone(s):
        e = Em(); e.vm = list(s.vm); e.lg = list(s.lg); e.vm_done = s.vm_done; e.lg_done = s.lg_done
        return e
    def a(s, t): s.L.append("    " + t)
    def lab(s, t): s.L.append(t + ":")
    def vmem(s, tag, t): s.a(t); s.vm.append(tag)
    def lds(s, tag, t): s.a(t); s.lg.append(tag)
    def wait_vm(s, tag):
        idx = max(i for i, x in enumerate(s.vm) if x == tag) + 1
        if idx <= s.vm_done: return
        n = len(s.vm) - idx
        assert n <= 63
        s.a(f"s_waitcnt vmcnt({n})"); s.vm_done = idx
    def wait_lg(s, tag):
        idx = max(i for i, x in enumerate(s.lg) if x == tag) + 1
        if idx <= s.lg_done: return
        n = len(s.lg) - idx
        assert n <= 15, (n, tag)
        s.a(f"s_waitcnt lgkmcnt({n})"); s.lg_done = idx

def ints(x): return [int(v) for v in str(x).split(",")]

def gen(opt):
    stf = opt.get("stflags", "sc1")
    T0 = opt.get("prof", False)
    PM = opt.get("pm", 1)
    LT = opt.get("lt", 2)
    e = Em(); a = e.a
    V = 0
    def alloc(n, al=1):
        nonlocal V
        V = (V + al - 1)//al*al
        r = V; V += n; return r
    v_tid = alloc(1)
    vT = alloc(5)
    vPf = alloc(1)
    vX = alloc(4)
    vWd = alloc(3)
    vB = alloc(2)
    vW = alloc(2)
    vO = alloc(1)
    vBi = alloc(1)
    vTch = alloc(1)
    vOt = alloc(1)
    vO2 = alloc(1)
    vTw = alloc(1, 2); vTr = alloc(1)
    vF = [alloc(24, 4) for _ in range(3)]
    NQ = 14
    vAcc = alloc(4*NQ, 4)
    vBias = alloc(24, 4)
    NPK = 4
    vPk = alloc(4*NPK, 4)
    NRB = 3
    vRb = alloc(4*NRB, 4)
    vWv = alloc(32, 4)
    assert V <= 256, V
    def wfrag(f):
        return (f"a[{4*f}:{4*f+3}]" if f < 64 else f"v[{vWv+4*(f-64)}:{vWv+4*(f-64)+3}]")
    def whalf(f, h):
        if f < 64: return f"a[{4*f+2*h}:{4*f+2*h+1}]"
        r = vWv+4*(f-64)+2*h
        return f"v[{r}:{r+1}]"
    def Ffrag(row, b, ks):
        r = vF[row % 3] + 4*(b*3+ks)
        return f"v[{r}:{r+3}]"
    def q4(r): return f"v[{r}:{r+3}]"
    sX, sX2, sW, sBs, sO = 12, 16, 20, 24, 28
    s_w, s_wh, s_o, s_px, s_py, s_strip, s_band, s_m0, s_R = 32, 33, 34, 35, 36, 37, 38, 39, 40
    s_t0, s_t1, s_t2, s_t3 = 41, 42, 43, 44
    s_xrow, s_iy, s_xb, s_pb, s_wmb = 45, 46, 47, 48, 49
    s_wo = 50
    s_or = 56
    s_o01 = 92
    s_mk = 60
    s_pc = 66
    s_tch = 68
    def stamp(i, pm=1):
        if T0 and pm == PM: a(f"s_mem{'time' if pm >= 6 else 'realtime'} s[{70+2*i}:{71+2*i}]")
    def cstamp(i):
        if T0: a(f"s_memtime s[{86+2*i}:{87+2*i}]")
    def qabk(q):
        aa = 1 - q//6; b = (q % 6)//3; ks = q % 3
        return aa, b, ks
    def wconst(q):
        aa, b, ks = qabk(q)
        return (8*aa + 2*b)*18432 + ks*6144
    t1, t2, t3, t4, t5 = [vT+i for i in range(5)]
    for pm in (1, 2, 3, 5): stamp(0, pm)
    a("s_cmp_ge_u32 s2, 256")
    a("s_cbranch_scc1 L_end")
    a("s_load_dwordx4 s[4:7], s[0:1], 0")
    a("s_load_dwordx4 s[8:11], s[0:1], 16")
    PFP = opt.get("pfpos", 0)
    def pf_addr():
        a(f"s_getpc_b64 s[{s_pc}:{s_pc+1}]")
        e.lab("L_pc")
        a(f"v_lshlrev_b32 v{t1}, 6, v0")
        a(f"v_min_u32 v{t1}, L_codeend-L_pc-4, v{t1}")
        a(f"v_mov_b32 v{vTw+1}, s{s_pc+1}")
        a(f"v_add_co_u32 v{vTw}, vcc, s{s_pc}, v{t1}")
    def pf_issue():
        e.vmem("PF", f"global_load_dword v{vPf}, v[{vTw}:{vTw+1}], off")
    assert vTw % 2 == 0 and vTr == vTw + 1
    pf_addr()
    a(f"v_lshrrev_b32 v{t4}, 6, v0")
    a(f"v_and_b32 v0, 63, v0")
    a(f"v_addc_co_u32 v{vTw+1}, vcc, 0, v{vTw+1}, vcc")
    a(f"v_readfirstlane_b32 s{s_w}, v{t4}")
    if PFP == 0: pf_issue()
    a(f"s_and_b32 s{s_t0}, s2, 7")
    a(f"s_lshr_b32 s{s_t1}, s2, 5")
    a(f"s_lshl3_add_u32 s{s_t1}, s{s_t1}, s{s_t0}")
    a(f"s_cmp_ge_u32 s{s_t1}, 63")
    a("s_cbranch_scc1 L_end")
    a(f"s_bfe_u32 s{s_px}, s2, 0x10003")
    a(f"s_bfe_u32 s{s_py}, s2, 0x10004")
    a(f"s_lshl2_add_u32 s{s_t1}, s{s_t1}, s{s_w}")
    a(f"s_mul_i32 s{s_band}, s{s_t1}, 4682")
    a(f"s_lshr_b32 s{s_band}, s{s_band}, 16")
    a(f"s_mul_i32 s{s_t0}, s{s_band}, 14")
    a(f"s_sub_u32 s{s_strip}, s{s_t1}, s{s_t0}")
    a(f"s_min_u32 s{s_t0}, s{s_band}, 8")
    a(f"s_mul_i32 s{s_m0}, s{s_band}, 12")
    a(f"s_add_u32 s{s_m0}, s{s_m0}, s{s_t0}")
    a(f"s_add_u32 s{s_iy}, s{s_m0}, s{s_py}")
    a(f"s_sub_u32 s{s_iy}, s{s_iy}, 1")
    a(f"s_mul_i32 s{s_xrow}, s{s_iy}, {XROW}")
    a(f"s_lshl4_add_u32 s{s_t0}, s{s_strip}, s{s_px}")
    a(f"s_sub_u32 s{s_t1}, s{s_t0}, 1")
    a(f"s_mulk_i32 s{s_t1}, 192")
    a(f"s_cmp_eq_u32 s{s_t0}, 0")
    a(f"s_cselect_b32 s{s_t2}, 12, 0")
    a(f"s_cmpk_gt_u32 s{s_t0}, 208")
    a(f"s_cselect_b32 s{s_t3}, 0, 12")
    a(f"s_mov_b32 s{s_mk}, 0")
    a(f"s_mov_b32 s{s_mk+1}, 0xffff0000")
    a(f"s_mov_b32 s{s_mk+2}, -1")
    a(f"s_mov_b32 s{s_mk+3}, 0")
    a(f"s_mov_b32 s{s_mk+4}, 0xffff0000")
    a(f"s_mov_b32 s{s_mk+5}, -1")
    a(f"v_lshlrev_b32 v{vWd}, 4, v0")
    a(f"v_xor_b32 v{t1}, 32, v{vWd}")
    a(f"v_add_u32 v{t1}, s{s_t1}, v{t1}")
    a(f"v_add_u32 v{vX+3}, s{s_t1}, v{vWd}")
    a(f"v_bfrev_b32 v{t3}, 1")
    a(f"v_cmp_gt_u32 vcc, s{s_t2}, v0")
    a(f"v_cndmask_b32 v{vX}, v{vX+3}, v{t1}, s[{s_mk}:{s_mk+1}]")
    a(f"v_cndmask_b32 v{vX+1}, v{vX+3}, v{t1}, s[{s_mk+2}:{s_mk+3}]")
    a(f"v_cndmask_b32 v{vX}, v{vX}, v{t3}, vcc")
    a(f"v_cmp_le_u32 vcc, s{s_t3}, v0")
    a(f"v_cndmask_b32 v{vX+2}, v{vX+3}, v{t1}, s[{s_mk+4}:{s_mk+5}]")
    a(f"v_lshrrev_b32 v{t2}, 5, v0")
    a(f"v_cndmask_b32 v{vX+3}, v{vX+3}, v{t3}, vcc")
    a(f"v_mul_u32_u24 v{t2}, 1536, v{t2}")
    a(f"v_add_u32 v{vWd+1}, v{vWd}, v{t2}")
    a(f"v_add_u32 v{vWd+2}, 1536, v{vWd}")
    a(f"s_lshr_b32 s{s_wh}, s{s_w}, 1")
    a(f"s_and_b32 s{s_o}, s{s_w}, 1")
    a(f"s_lshl2_add_u32 s{s_t0}, s{s_py}, s{s_px}")
    a(f"s_sub_u32 s{s_t0}, 5, s{s_t0}")
    a(f"s_mul_i32 s{s_pb}, s{s_t0}, 18432")
    a(f"s_mul_i32 s{s_t0}, s{s_o}, 1536")
    a(f"s_add_u32 s{s_pb}, s{s_pb}, s{s_t0}")
    a(f"s_mul_i32 s{s_t2}, s{s_o}, 3080")
    a(f"s_mul_i32 s{s_t3}, s{s_wh}, {CH}")
    a(f"s_add_u32 s{s_wmb}, s{s_t2}, s{s_t3}")
    a(f"s_mul_i32 s{s_xb}, s{s_w}, {NS*SLOT}")
    a(f"s_add_u32 s{s_xb}, s{s_xb}, {XBASE}")
    def wo_calc(j):
        c0, c1 = wconst(2*j), wconst(2*j+1)
        a(f"s_cmp_eq_u32 s{s_wh}, 0")
        a(f"s_mov_b32 s{s_t0}, {c1}")
        a(f"s_cselect_b32 s{s_t0}, {c0}, s{s_t0}")
        a(f"s_add_u32 s{s_wo+j}, s{s_t0}, s{s_pb}")
    wo_calc(0)
    for s_, size in ((sX, XB), (sW, WB), (sBs, 192)):
        a(f"s_mov_b32 s{s_+2}, {size}")
        a(f"s_mov_b32 s{s_+3}, 0x20000")
    a(f"s_mov_b32 s{sX2+3}, 0x20000")
    a(f"v_lshrrev_b32 v{t2}, 4, v0")
    a(f"v_lshlrev_b32 v{vBi}, 4, v{t2}")
    a("s_waitcnt lgkmcnt(0)")
    stamp(1); stamp(1, 3)
    for s_, p in ((sW, 6), (sX2, 4), (sBs, 8), (sX, 4)):
        a(f"s_mov_b32 s{s_}, s{p}")
        a(f"s_and_b32 s{s_+1}, s{p+1}, 0xffff")

    def xrow_dma(r):
        L = []
        chk = r in (0, 12, 13)
        srd = sX2 if chk else sX
        def pre():
            if chk:
                a(f"s_cmp_lt_u32 s{s_iy}, 224")
                a(f"s_cselect_b32 s{sX2+2}, {XB}, 0")
            a(f"s_add_u32 m0, s{s_xb}, {(r % NS)*SLOT}")
        L.append(pre)
        for k in range(4):
            def ld(k=k):
                off = f" offset:{1024*k}" if k else ""
                if k == 3: a("s_mov_b64 exec, 0xfff")
                e.vmem(f"X{r}", f"buffer_load_dwordx4 v{vX+k}, s[{srd}:{srd+3}], s{s_xrow} offen{off} lds")
                if k == 3:
                    a("s_mov_b64 exec, -1")
                    a(f"s_add_u32 s{s_xrow}, s{s_xrow}, {XROW}")
                    a(f"s_add_u32 s{s_iy}, s{s_iy}, 1")
            L.append(ld)
        return L
    def w_dma(j):
        L = []
        def pre():
            if j > 0: wo_calc(j)
            a(f"s_add_u32 m0, s{s_wmb}, {2*j*CH}")
        L.append(pre)
        for k in range(3):
            def ld(k=k):
                off = f" offset:{1024*k}" if k else ""
                e.vmem(f"W{j}", f"buffer_load_dwordx4 v{vWd+k}, s[{sW}:{sW+3}], s{s_wo+j} offen{off} lds")
            L.append(ld)
        return L
    vbt = vAcc
    def bi_loads():
        L = [lambda: None]
        for p in range(3):
            L.append(lambda p=p: e.vmem("BI", f"buffer_load_dwordx4 {q4(vbt+4*p)}, v{vBi}, s[{sBs}:{sBs+3}], 0 offen offset:{64*p}"))
        return L
    def touch_setup():
        a(f"s_lshl_b32 s{s_t0}, s{s_strip}, 4")
        a(f"s_sub_i32 s{s_t0}, s{s_t0}, 1")
        a(f"s_max_i32 s{s_t0}, s{s_t0}, 0")
        a(f"s_mulk_i32 s{s_t0}, 192")
        a(f"v_lshlrev_b32 v{vTch}, {7 if opt.get('t128') else 6}, v0")
        a(f"v_add_u32 v{vTch}, s{s_t0}, v{vTch}")
        a(f"s_lshl1_add_u32 s{s_t0}, s{s_py}, s{s_px}")
        a(f"s_add_u32 s{s_t0}, s{s_t0}, s{s_m0}")
        a(f"s_add_u32 s{s_tch}, s{s_t0}, 4")
    def touch(i):
        def f():
            a(f"s_min_u32 s{s_tch+1}, s{s_tch}, 223")
            a(f"s_mul_i32 s{s_tch+1}, s{s_tch+1}, {XROW}")
            if opt.get('t128'): a("s_mov_b64 exec, 0xfffffff")
            elif opt.get('t54'): a("s_mov_b64 exec, s[90:91]")
            e.vmem("TC", f"buffer_load_dword v{vPf}, v{vTch}, s[{sX}:{sX+3}], s{s_tch+1} offen")
            if opt.get('t128') or opt.get('t54'): a("s_mov_b64 exec, -1")
            a(f"s_add_u32 s{s_tch}, s{s_tch}, 4")
        return [lambda: None, f]
    def grp(name):
        k, n = name[0], name[1:]
        if k == "X": return xrow_dma(int(n))
        if k == "W": return w_dma(int(n))
        if k == "T": return touch(int(n))
        if k == "B": return bi_loads()
        if k == "P": return [lambda: None, pf_issue]
        if k == "O":
            def ot():
                a("s_mov_b64 exec, 0x1fff")
                e.vmem("OT", f"buffer_load_dword v{vPf}, v{vOt}, s[{sO}:{sO+3}], s{s_or} offen")
                a("s_mov_b64 exec, -1")
            return [lambda: None, ot]
        raise ValueError(name)
    def run(L):
        for i, f in enumerate(L):
            f()
            if i == 0: a("s_nop 0")
    def f_reads(r):
        L = []
        for b in range(2):
            for ks in range(3):
                def rd(b=b, ks=ks):
                    e.lds(f"F{r}", f"ds_read_b128 {Ffrag(r, b, ks)}, v{vB+b} offset:{(r % NS)*SLOT + 64*ks}")
                L.append(rd)
        return L
    pre = str(opt.get("pre", "W0,X0,X1,B,W1|W2,X2,W3")).split("|")
    preA = pre[0].split(","); preB = pre[1].split(",") if len(pre) > 1 and pre[1] else []
    for g_ in preA: run(grp(g_))
    stamp(2, 3)
    for s_, size, p in ((sO, OB, 10),):
        a(f"s_mov_b32 s{s_}, s{p}")
        a(f"s_and_b32 s{s_+1}, s{p+1}, 0xffff")
        a(f"s_mov_b32 s{s_+2}, {size}")
        a(f"s_mov_b32 s{s_+3}, 0x20000")
    a(f"v_lshrrev_b32 v{t2}, 4, v0")
    a(f"v_and_b32 v{t3}, 15, v0")
    for b in range(2):
        a(f"v_add_u32 v{t4}, {1-b}, v{t3}")
        a(f"v_mul_u32_u24 v{t5}, 192, v{t4}")
        a(f"v_add_u32 v{t5}, v{t5}, v{vBi}")
        a(f"v_lshlrev_b32 v{t4}, 3, v{t4}")
        a(f"v_and_b32 v{t4}, 32, v{t4}")
        a(f"v_xor_b32 v{t5}, v{t5}, v{t4}")
        a(f"v_add_u32 v{vB+b}, s{s_xb}, v{t5}")
    a(f"v_and_b32 v{t4}, 1, v{t2}")
    a(f"v_mul_u32_u24 v{t4}, 3080, v{t4}")
    a(f"v_lshrrev_b32 v{t5}, 1, v{t2}")
    a(f"v_mul_u32_u24 v{t5}, 1536, v{t5}")
    a(f"v_add_u32 v{t4}, v{t4}, v{t5}")
    a(f"v_lshrrev_b32 v{t5}, 2, v{t3}")
    a(f"v_mul_u32_u24 v{t5}, 192, v{t5}")
    a(f"v_add_u32 v{t4}, v{t4}, v{t5}")
    a(f"v_and_b32 v{t5}, 3, v{t3}")
    a(f"v_lshlrev_b32 v{t5}, 4, v{t5}")
    a(f"v_add_u32 v{vW}, v{t4}, v{t5}")
    a(f"v_add_u32 v{vW+1}, {6*CH}, v{vW}")
    stamp(3, 3)
    touch_setup()
    if opt.get("t54"):
        a("s_mov_b32 s90, -1"); a("s_mov_b32 s91, 0x3fffff")
    def late_setup():
        L = []
        L.append(lambda: a(f"s_lshl1_add_u32 s{s_t0}, s{s_m0}, s{s_py}"))
        L.append(lambda: a(f"s_mulk_i32 s{s_t0}, 448"))
        L.append(lambda: a(f"s_lshl_b32 s{s_t1}, s{s_strip}, 5"))
        L.append(lambda: a(f"s_add_u32 s{s_t0}, s{s_t0}, s{s_t1}"))
        L.append(lambda: a(f"s_add_u32 s{s_t0}, s{s_t0}, s{s_px}"))
        L.append(lambda: a(f"s_mul_i32 s{s_or}, s{s_t0}, 192"))
        L.append(lambda: a(f"s_add_u32 s{s_or+1}, s{s_or}, {OROW2}"))
        L.append(lambda: a(f"s_mov_b32 s{s_o01}, s{s_or}"))
        L.append(lambda: a(f"s_mov_b32 s{s_o01+1}, s{s_or+1}"))
        L.append(lambda: a(f"s_cmp_lt_u32 s{s_band}, 8"))
        L.append(lambda: a(f"s_cselect_b32 s{s_R}, 13, 12"))
        return L
    for f in late_setup(): f()
    a(f"s_mov_b32 s{s_t0}, {OROW2}")
    a(f"v_mul_lo_u32 v{vOt}, s{s_t0}, v0")
    for g_ in preB: run(grp(g_))
    stamp(4, 3)
    if LT:
        a(f"s_lshl_b32 s{s_t0}, s{s_w}, 13")
        a(f"v_lshrrev_b32 v{t4}, 1, v{t3}")
        a(f"v_and_b32 v{t4}, 3, v{t4}")
        a(f"v_xor_b32 v{t4}, v{t4}, v{t2}")
        a(f"v_lshlrev_b32 v{t4}, 4, v{t4}")
        a(f"v_lshlrev_b32 v{t5}, 6, v{t3}")
        a(f"v_add3_u32 v{vTw}, v{t4}, v{t5}, s{s_t0}")
        a(f"v_lshrrev_b32 v{t1}, 2, v0")
        a(f"v_and_b32 v{t4}, 3, v0")
        a(f"v_mul_u32_u24 v{t5}, 384, v{t1}")
        a(f"v_lshl_add_u32 v{vO2}, v{t4}, 4, v{t5}")
        a(f"v_bfe_u32 v{t5}, v{t1}, 1, 2")
        a(f"v_xor_b32 v{t4}, v{t4}, v{t5}")
        a(f"v_lshlrev_b32 v{t4}, 4, v{t4}")
        a(f"v_lshlrev_b32 v{t5}, 6, v{t1}")
        a(f"v_add3_u32 v{vTr}, v{t4}, v{t5}, s{s_t0}")
    a(f"v_mul_u32_u24 v{t4}, 384, v{t3}")
    a(f"v_add_u32 v{vO}, v{t4}, v{vBi}")
    e.wait_vm("BI")
    stamp(5, 3)
    for p in range(3):
        for h in range(2):
            for r in range(4):
                src = vbt + 4*p + (4*h+r)//2
                dst = vBias + 4*(2*p+h) + r
                if r & 1: a(f"v_and_b32 v{dst}, 0xffff0000, v{src}")
                else: a(f"v_lshlrev_b32 v{dst}, 16, v{src}")
    e.wait_vm("X0")
    for f in f_reads(0): f()
    e.wait_vm("X1")
    stamp(6, 3)
    for f in f_reads(1): f()
    free = list(range(NQ))
    def take(): return vAcc + 4*free.pop(0)
    def give(r): free.append((r - vAcc)//4)
    acc = [[take() for t in range(6)] for tile in range(2)]
    LAG = opt.get("lag", 5)
    def rd_half(f, half):
        q, t = divmod(f, 6); p, h = divmod(t, 2)
        off = (q % 6)*CH + half*768 + 64*p + 8*h
        e.lds(f"R{f}", f"ds_read_b64_tr_b16 {whalf(f, half)}, v{vW + q//6} offset:{off}")
    def mf(d, f, bfr, c):
        a(f"v_mfma_f32_16x16x32_bf16 {q4(d)}, {wfrag(f)}, {bfr}, {q4(c)}")
    ex = {}
    def atg(G, f): ex.setdefault(G, []).append(f)
    for item in str(opt.get("inp", "W4@2,W5@10,X3@18,T0@26,T1@30,T2@34,X4@40")).split(","):
        if not item: continue
        name, pos = item.split("@"); pos = int(pos)
        L = grp(name)
        atg(2*pos, L[0])
        step = opt.get("pace", 1)
        for k, f in enumerate(L[1:]): atg(2*(pos + k*step) + 1, f)
    f2 = opt.get("f2pos", 26)
    atg(2*f2, lambda: e.wait_vm("X2"))
    for i, f in enumerate(f_reads(2)): atg(2*(f2+1+i) + 1, f)
    f3 = opt.get("f3pos", 60)
    atg(2*f3, lambda: e.wait_vm("X3"))
    for i, f in enumerate(f_reads(3)): atg(2*(f3+1+i) + 1, f)
    def stage_gate(n):
        if n < 72 and n % 12 == 0:
            e.wait_vm(f"W{n//12}")
            a("s_barrier")
            if n == 0: stamp(3); stamp(7, 3)
            stamp(1 + n//12, 2); stamp(n//12, 7)
    for n in range(LAG):
        stage_gate(n)
        rd_half(n, 0); rd_half(n, 1)
    for m in range(72):
        n = m + LAG
        q, t = divmod(m, 6); aa, b, ks = qabk(q)
        if m == 0: e.wait_lg("F1")
        if m == 36: e.wait_lg("F2")
        e.wait_lg(f"R{m}")
        if m == 0: stamp(4)
        for tile in range(2):
            row = tile + (1 - aa)
            c = (vBias + 4*t) if q == 0 else acc[tile][t]
            mf(acc[tile][t], m, Ffrag(row, b, ks), c)
            if tile == 0: stage_gate(n)
            if n < 72: rd_half(n, tile)
            for f in ex.get(2*m + tile, []): f()
    stamp(5); stamp(7, 2); stamp(6, 7); cstamp(0)
    pkfree = [vPk + 4*i for i in range(NPK)]
    rbfree = [vRb + 4*i for i in range(NRB)]
    tcount = [0]
    def epi_ops(accq, p, tile, slot=None):
        A, B = accq
        lt = LT == 1 or (LT == 2 and tile < opt.get("ltn", 2))
        box = {}
        cv = (lambda t: None) if opt.get("nocvt") else a
        def c0():
            box["pk"] = pkfree.pop(0)
            cv(f"v_cvt_pk_bf16_f32 v{box['pk']}, v{A}, v{A+1}")
        def c1(): cv(f"v_cvt_pk_bf16_f32 v{box['pk']+1}, v{A+2}, v{A+3}"); give(A)
        def c2(): cv(f"v_cvt_pk_bf16_f32 v{box['pk']+2}, v{B}, v{B+1}")
        def c3(): cv(f"v_cvt_pk_bf16_f32 v{box['pk']+3}, v{B+2}, v{B+3}"); give(B)
        off = f" offset:{64*p}" if p else ""
        fl = (" " + stf) if stf else ""
        def wr():
            box["buf"] = (6 + tcount[0] % 2)*1024 if slot is None else slot*1024
            tcount[0] += 1
            box["id"] = f"T{tcount[0]}"
            e.lds(box["id"] + "w", f"ds_write_b128 v{vTw}, {q4(box['pk'])} offset:{box['buf']}")
            pkfree.append(box["pk"])
        def rd():
            box["rb"] = rbfree.pop(0)
            e.lds(box["id"] + "r", f"ds_read_b128 {q4(box['rb'])}, v{vTr} offset:{box['buf']}")
        def wt(): e.wait_lg(box["id"] + "r")
        def st():
            src = box["rb"] if lt else box["pk"]
            if not opt.get("nost"):
                so = (s_o01 + tile) if tile < 2 else (s_or + tile % 4)
                e.vmem("ST", f"buffer_store_dwordx4 {q4(src)}, v{vO2 if lt else vO}, s[{sO}:{sO+3}], s{so} offen{off}{fl}")
            (rbfree if lt else pkfree).append(src)
        if lt: return [c0, c1], [c2, c3], [wr, rd, wt, st]
        return [c0, c1], [c2, c3], [st]
    carry = []
    for tile in range(2):
        for p in range(3):
            c01, c23, fin = epi_ops((acc[tile][2*p], acc[tile][2*p+1]), p, tile, slot=3*tile+p)
            carry.append((c01 + c23, fin))
    FINOFF = ints(opt.get("finoff", "10,13,19,20"))
    def steady(i, carry_sched):
        ex = {}
        def put(n, f): ex.setdefault(n, []).append(f)
        for n, L in carry_sched.items():
            for f in L: put(n, f)
        for n, f in deferred.get(i, []): put(n, f)
        put(1, lambda: a(f"s_add_u32 s{s_or + i % 4}, s{s_or + (i-1) % 4}, {OROW2}"))
        if i == 2: put(4, lambda: e.wait_lg("F3"))
        r = i + 2
        DD = opt.get("dd", 3)
        rows = [x for x in (([5, 6] if i == 2 else [i + 4]) if DD == 4 else [i + 3]) if x <= 13]
        if not opt.get("nodma"):
            dp0 = ints(opt.get("dmapos", "2,4,26,28"))
            for ri, r_ in enumerate(rows):
                L = xrow_dma(r_)
                dp = dp0
                if i == 2: dp = ints(opt.get("dma2", "50,55,60,65")) if ri == 0 else [62, 64, 66, 68]
                put(dp[0] - 1, L[0])
                for k in range(4): put(dp[k], L[1+k])
        if r <= 13:
            if not opt.get("nodma") or r < 5: put(opt.get("xwpos", 40), lambda: e.wait_vm(f"X{r}"))
            rp = ints(opt.get("rdpos", "41,42,43,50,51,52"))
            for k, f in enumerate(f_reads(r)): put(rp[k], f)
            put(66, lambda: e.wait_lg(f"F{r}"))
        accs = []
        nxt = {}
        for t in range(6):
            d = take(); accs.append(d)
            for q in range(12):
                n = 12*t + q
                aa, b, ks = qabk(q)
                row = i + (1 - aa)
                c = (vBias + 4*t) if q == 0 else d
                if PM == 6 and i == opt.get("ptile", 2) and q == 0: stamp(t, 6)
                if PM == 6 and i == opt.get("ptile", 2) + 1 and n == 0: stamp(6, 6)
                if PM == 6 and i == opt.get("ptile", 2) + 1 and n == 36: stamp(7, 6)
                mf(d, q*6 + t, Ffrag(row, b, ks), c)
                for f in ex.get(n, []): f()
            if t % 2 == 1:
                p = t//2
                c01, c23, fin = epi_ops((accs[t-1], accs[t]), p, i)
                base = 12*t + 12
                tgt = [(base + 0, c01[0]), (base + 1, c01[1]), (base + 8, c23[0]), (base + 9, c23[1])]
                tgt += [(base + (FINOFF[k] if len(fin) > 1 else 10), f) for k, f in enumerate(fin)]
                for n_, f in tgt:
                    if n_ < 72: put(n_, f)
                    else: nxt.setdefault(n_ - 72, []).append(f)
        return nxt
    cs = {}
    deferred = {}
    cstep = opt.get("cstep", 6)
    SPREAD = ints(opt.get("spread", "2,3,4,5,6,7"))
    for k, (cv_, fin) in enumerate(carry):
        b0 = cstep*k
        for j, f in enumerate(cv_): cs.setdefault(b0 + j, []).append(f)
        if len(fin) == 1:
            cs.setdefault(b0 + 4, []).append(fin[0])
            continue
        cs.setdefault(b0 + 4, []).append(fin[0])
        tl_ = SPREAD[k]
        nth = len([1 for kk in range(k) if SPREAD[kk] == tl_])
        p0 = ints(opt.get("defpos", "40,16,64"))[nth]
        if tl_ == 2: p0 = max(p0, b0 + 6)
        deferred.setdefault(tl_, []).extend([(p0, fin[1]), (p0 + 6, fin[2]), (p0 + 7, fin[3])])
    def tail(em_carry):
        a("s_nop 7")
        for n in sorted(em_carry):
            for f in em_carry[n]: f()
    def prof_dump(em):
        if not T0: return
        b = em.a
        b("s_waitcnt vmcnt(0)")
        if PM == 1: b(f"s_memrealtime s[{70+14}:{71+14}]")
        b("s_waitcnt lgkmcnt(0)")
        b("s_load_dwordx2 s[4:5], s[0:1], 40")
        b("s_waitcnt lgkmcnt(0)")
        b("s_mov_b32 s8, s4"); b("s_and_b32 s9, s5, 0xffff"); b("s_mov_b32 s10, 0x10000000"); b("s_mov_b32 s11, 0x20000")
        b("v_mov_b32 v1, 0")
        for i in range(8): b(f"v_writelane_b32 v1, s{70+2*i}, {i}")
        b(f"v_writelane_b32 v1, s{s_R}, 14")
        b("s_sub_u32 s86, s88, s86")
        b(f"v_writelane_b32 v1, s86, 13")
        b("s_getreg_b32 s87, hwreg(HW_REG_XCC_ID)")
        b(f"v_writelane_b32 v1, s87, 12")
        b(f"s_lshl_b32 s6, s2, 2"); b(f"s_add_u32 s6, s6, s{s_w}"); b("s_lshl_b32 s6, s6, 6")
        b("v_lshlrev_b32 v3, 2, v0")
        b("v_cmp_gt_u32 vcc, 16, v0")
        b("s_and_saveexec_b64 s[12:13], vcc")
        b("buffer_store_dword v1, v3, s[8:11], s6 offen")
        b("s_waitcnt vmcnt(0)")
    nxt = cs
    saved = None
    tl = ints(opt.get("tl", "2,3,4,5,6,8,10"))
    for i in range(2, 13):
        if i == 12:
            a(f"s_cmp_eq_u32 s{s_R}, 12")
            a("s_cbranch_scc1 L_tail12")
            saved = (e.clone(), dict(nxt), list(pkfree), list(rbfree), tcount[0])
        if i in tl: stamp(1 + tl.index(i), 5)
        if i == 3: stamp(7, 7)
        nxt = steady(i, nxt)
    stamp(6); cstamp(1)
    tail(nxt)
    prof_dump(e)
    a("s_endpgm")
    em0, nx0, pk0, rb0, tc0 = saved
    L_main = e.L
    e.L = []; e.vm = em0.vm; e.lg = em0.lg; e.vm_done = em0.vm_done; e.lg_done = em0.lg_done
    pkfree[:] = pk0; rbfree[:] = rb0; tcount[0] = tc0
    e.lab("L_tail12")
    stamp(6); cstamp(1)
    tail(nx0)
    prof_dump(e)
    e.lab("L_end")
    a("s_endpgm")
    e.lab("L_codeend")
    body = "\n".join(L_main + e.L)
    hdr = f"""; ConvTranspose2d(k=4, s=2, p=1), NHWC bf16, 224x224x96 -> 448x448x96  (generated by my own script)
; @launch grid=(256,1,1) block=(256,1,1) lds={LDS}
.amdgcn_target "amdgcn-amd-amdhsa--gfx950"
.text
.globl {KNAME}
.p2align 8
.type {KNAME},@function
{KNAME}:
{body}
.section .rodata,"a"
.p2align 6
.amdhsa_kernel {KNAME}
  .amdhsa_next_free_vgpr 512
  .amdhsa_next_free_sgpr 96
  .amdhsa_accum_offset 256
  .amdhsa_group_segment_fixed_size 0
  .amdhsa_kernarg_size 48
  .amdhsa_user_sgpr_count 2
  .amdhsa_user_sgpr_kernarg_segment_ptr 1
  .amdhsa_system_sgpr_workgroup_id_x 1
.end_amdhsa_kernel
"""
    return hdr

if __name__ == "__main__":
    import mk
    out = sys.argv[1] if len(sys.argv) > 1 else "k5.s"
    opt = {}
    for x in sys.argv[2:]:
        k, v = x.split("=")
        opt[k] = int(v) if v.lstrip("-").isdigit() else v
    open(out, "w").write(gen(opt))
    print(mk.build(out))
```

```python
import sys
KNAME = "standalone__transposed_strided__vision_kernel"
XB = 9633792; WB = 294912; OB = 38535168
XROW = 224*192
OROW2 = 2*448*192
CH = 6160
XBASE = 73984
NS = 5
SLOT = 4096
LDS = XBASE + 4*NS*SLOT

class Em:
    def __init__(s):
        s.L = []; s.vm = []; s.lg = []; s.vm_done = 0; s.lg_done = 0
    def clone(s):
        e = Em(); e.vm = list(s.vm); e.lg = list(s.lg); e.vm_done = s.vm_done; e.lg_done = s.lg_done
        return e
    def a(s, t): s.L.append("    " + t)
    def lab(s, t): s.L.append(t + ":")
    def vmem(s, tag, t): s.a(t); s.vm.append(tag)
    def lds(s, tag, t): s.a(t); s.lg.append(tag)
    def wait_vm(s, tag):
        idx = max(i for i, x in enumerate(s.vm) if x == tag) + 1
        if idx <= s.vm_done: return
        n = len(s.vm) - idx
        assert n <= 63
        s.a(f"s_waitcnt vmcnt({n})"); s.vm_done = idx
    def wait_lg(s, tag):
        idx = max(i for i, x in enumerate(s.lg) if x == tag) + 1
        if idx <= s.lg_done: return
        n = len(s.lg) - idx
        assert n <= 15, (n, tag)
        s.a(f"s_waitcnt lgkmcnt({n})"); s.lg_done = idx

def ints(x): return [int(v) for v in str(x).split(",")]

def gen(opt):
    stf = opt.get("stflags", "sc1")
    T0 = opt.get("prof", False)
    PM = opt.get("pm", 1)
    LT = opt.get("lt", 2)
    e = Em(); a = e.a
    V = 0
    def alloc(n, al=1):
        nonlocal V
        V = (V + al - 1)//al*al
        r = V; V += n; return r
    v_tid = alloc(1)
    vT = alloc(5)
    vPf = alloc(1)
    vX = alloc(4)
    vWd = alloc(3)
    vB = alloc(2)
    vW = alloc(2)
    vO = alloc(1)
    vBi = alloc(1)
    vTch = alloc(1)
    vOt = alloc(1)
    vO2 = alloc(1)
    vTw = alloc(1, 2); vTr = alloc(1)
    vF = [alloc(24, 4) for _ in range(3)]
    NQ = 14
    vAcc = alloc(4*NQ, 4)
    vBias = alloc(24, 4)
    NPK = 4
    vPk = alloc(4*NPK, 4)
    NRB = 3
    vRb = alloc(4*NRB, 4)
    vWv = alloc(32, 4)
    assert V <= 256, V
    def wfrag(f):
        return (f"a[{4*f}:{4*f+3}]" if f < 64 else f"v[{vWv+4*(f-64)}:{vWv+4*(f-64)+3}]")
    def whalf(f, h):
        if f < 64: return f"a[{4*f+2*h}:{4*f+2*h+1}]"
        r = vWv+4*(f-64)+2*h
        return f"v[{r}:{r+1}]"
    def Ffrag(row, b, ks):
        r = vF[row % 3] + 4*(b*3+ks)
        return f"v[{r}:{r+3}]"
    def q4(r): return f"v[{r}:{r+3}]"
    sX, sX2, sW, sBs, sO = 12, 16, 20, 24, 28
    s_w, s_wh, s_o, s_px, s_py, s_strip, s_band, s_m0, s_R = 32, 33, 34, 35, 36, 37, 38, 39, 40
    s_t0, s_t1, s_t2, s_t3 = 41, 42, 43, 44
    s_xrow, s_iy, s_xb, s_pb, s_wmb = 45, 46, 47, 48, 49
    s_wo = 50
    s_or = 56
    s_o01 = 92
    s_mk = 60
    s_pc = 66
    s_tch = 68
    def stamp(i, pm=1):
        if T0 and pm == PM: a(f"s_mem{'time' if pm >= 6 else 'realtime'} s[{70+2*i}:{71+2*i}]")
    def cstamp(i):
        if T0: a(f"s_memtime s[{86+2*i}:{87+2*i}]")
    def qabk(q):
        aa = 1 - q//6; b = (q % 6)//3; ks = q % 3
        return aa, b, ks
    def wconst(q):
        aa, b, ks = qabk(q)
        return (8*aa + 2*b)*18432 + ks*6144
    t1, t2, t3, t4, t5 = [vT+i for i in range(5)]
    for pm in (1, 2, 3, 5): stamp(0, pm)
    a("s_cmp_ge_u32 s2, 256")
    a("s_cbranch_scc1 L_end")
    a("s_load_dwordx4 s[4:7], s[0:1], 0")
    a("s_load_dwordx4 s[8:11], s[0:1], 16")
    PFP = opt.get("pfpos", 0)
    def pf_addr():
        a(f"s_getpc_b64 s[{s_pc}:{s_pc+1}]")
        e.lab("L_pc")
        a(f"v_lshlrev_b32 v{t1}, 6, v0")
        a(f"v_min_u32 v{t1}, L_codeend-L_pc-4, v{t1}")
        a(f"v_mov_b32 v{vTw+1}, s{s_pc+1}")
        a(f"v_add_co_u32 v{vTw}, vcc, s{s_pc}, v{t1}")
    def pf_issue():
        e.vmem("PF", f"global_load_dword v{vPf}, v[{vTw}:{vTw+1}], off")
    assert vTw % 2 == 0 and vTr == vTw + 1
    pf_addr()
    a(f"v_lshrrev_b32 v{t4}, 6, v0")
    a(f"v_and_b32 v0, 63, v0")
    a(f"v_addc_co_u32 v{vTw+1}, vcc, 0, v{vTw+1}, vcc")
    a(f"v_readfirstlane_b32 s{s_w}, v{t4}")
    if PFP == 0: pf_issue()
    a(f"s_and_b32 s{s_t0}, s2, 7")
    a(f"s_lshr_b32 s{s_t1}, s2, 5")
    a(f"s_lshl3_add_u32 s{s_t1}, s{s_t1}, s{s_t0}")
    a(f"s_cmp_ge_u32 s{s_t1}, 63")
    a("s_cbranch_scc1 L_end")
    a(f"s_bfe_u32 s{s_px}, s2, 0x10003")
    a(f"s_bfe_u32 s{s_py}, s2, 0x10004")
    a(f"s_lshl2_add_u32 s{s_t1}, s{s_t1}, s{s_w}")
    a(f"s_mul_i32 s{s_band}, s{s_t1}, 4682")
    a(f"s_lshr_b32 s{s_band}, s{s_band}, 16")
    a(f"s_mul_i32 s{s_t0}, s{s_band}, 14")
    a(f"s_sub_u32 s{s_strip}, s{s_t1}, s{s_t0}")
    a(f"s_min_u32 s{s_t0}, s{s_band}, 8")
    a(f"s_mul_i32 s{s_m0}, s{s_band}, 12")
    a(f"s_add_u32 s{s_m0}, s{s_m0}, s{s_t0}")
    a(f"s_add_u32 s{s_iy}, s{s_m0}, s{s_py}")
    a(f"s_sub_u32 s{s_iy}, s{s_iy}, 1")
    a(f"s_mul_i32 s{s_xrow}, s{s_iy}, {XROW}")
    a(f"s_lshl4_add_u32 s{s_t0}, s{s_strip}, s{s_px}")
    a(f"s_sub_u32 s{s_t1}, s{s_t0}, 1")
    a(f"s_mulk_i32 s{s_t1}, 192")
    a(f"s_cmp_eq_u32 s{s_t0}, 0")
    a(f"s_cselect_b32 s{s_t2}, 12, 0")
    a(f"s_cmpk_gt_u32 s{s_t0}, 208")
    a(f"s_cselect_b32 s{s_t3}, 0, 12")
    a(f"s_mov_b32 s{s_mk}, 0")
    a(f"s_mov_b32 s{s_mk+1}, 0xffff0000")
    a(f"s_mov_b32 s{s_mk+2}, -1")
    a(f"s_mov_b32 s{s_mk+3}, 0")
    a(f"s_mov_b32 s{s_mk+4}, 0xffff0000")
    a(f"s_mov_b32 s{s_mk+5}, -1")
    a(f"v_lshlrev_b32 v{vWd}, 4, v0")
    a(f"v_xor_b32 v{t1}, 32, v{vWd}")
    a(f"v_add_u32 v{t1}, s{s_t1}, v{t1}")
    a(f"v_add_u32 v{vX+3}, s{s_t1}, v{vWd}")
    a(f"v_bfrev_b32 v{t3}, 1")
    a(f"v_cmp_gt_u32 vcc, s{s_t2}, v0")
    a(f"v_cndmask_b32 v{vX}, v{vX+3}, v{t1}, s[{s_mk}:{s_mk+1}]")
    a(f"v_cndmask_b32 v{vX+1}, v{vX+3}, v{t1}, s[{s_mk+2}:{s_mk+3}]")
    a(f"v_cndmask_b32 v{vX}, v{vX}, v{t3}, vcc")
    a(f"v_cmp_le_u32 vcc, s{s_t3}, v0")
    a(f"v_cndmask_b32 v{vX+2}, v{vX+3}, v{t1}, s[{s_mk+4}:{s_mk+5}]")
    a(f"v_lshrrev_b32 v{t2}, 5, v0")
    a(f"v_cndmask_b32 v{vX+3}, v{vX+3}, v{t3}, vcc")
    a(f"v_mul_u32_u24 v{t2}, 1536, v{t2}")
    a(f"v_add_u32 v{vWd+1}, v{vWd}, v{t2}")
    a(f"v_add_u32 v{vWd+2}, 1536, v{vWd}")
    a(f"s_lshr_b32 s{s_wh}, s{s_w}, 1")
    a(f"s_and_b32 s{s_o}, s{s_w}, 1")
    a(f"s_lshl2_add_u32 s{s_t0}, s{s_py}, s{s_px}")
    a(f"s_sub_u32 s{s_t0}, 5, s{s_t0}")
    a(f"s_mul_i32 s{s_pb}, s{s_t0}, 18432")
    a(f"s_mul_i32 s{s_t0}, s{s_o}, 1536")
    a(f"s_add_u32 s{s_pb}, s{s_pb}, s{s_t0}")
    a(f"s_mul_i32 s{s_t2}, s{s_o}, 3080")
    a(f"s_mul_i32 s{s_t3}, s{s_wh}, {CH}")
    a(f"s_add_u32 s{s_wmb}, s{s_t2}, s{s_t3}")
    a(f"s_mul_i32 s{s_xb}, s{s_w}, {NS*SLOT}")
    a(f"s_add_u32 s{s_xb}, s{s_xb}, {XBASE}")
    def wo_calc(j):
        c0, c1 = wconst(2*j), wconst(2*j+1)
        a(f"s_cmp_eq_u32 s{s_wh}, 0")
        a(f"s_mov_b32 s{s_t0}, {c1}")
        a(f"s_cselect_b32 s{s_t0}, {c0}, s{s_t0}")
        a(f"s_add_u32 s{s_wo+j}, s{s_t0}, s{s_pb}")
    wo_calc(0)
    for s_, size in ((sX, XB), (sW, WB), (sBs, 192)):
        a(f"s_mov_b32 s{s_+2}, {size}")
        a(f"s_mov_b32 s{s_+3}, 0x20000")
    a(f"s_mov_b32 s{sX2+3}, 0x20000")
    a(f"v_lshrrev_b32 v{t2}, 4, v0")
    a(f"v_lshlrev_b32 v{vBi}, 4, v{t2}")
    a("s_waitcnt lgkmcnt(0)")
    stamp(1); stamp(1, 3)
    for s_, p in ((sW, 6), (sX2, 4), (sBs, 8), (sX, 4)):
        a(f"s_mov_b32 s{s_}, s{p}")
        a(f"s_and_b32 s{s_+1}, s{p+1}, 0xffff")

    def xrow_dma(r):
        L = []
        chk = r in (0, 12, 13)
        srd = sX2 if chk else sX
        def pre():
            if chk:
                a(f"s_cmp_lt_u32 s{s_iy}, 224")
                a(f"s_cselect_b32 s{sX2+2}, {XB}, 0")
            a(f"s_add_u32 m0, s{s_xb}, {(r % NS)*SLOT}")
        L.append(pre)
        for k in range(4):
            def ld(k=k):
                off = f" offset:{1024*k}" if k else ""
                if k == 3: a("s_mov_b64 exec, 0xfff")
                e.vmem(f"X{r}", f"buffer_load_dwordx4 v{vX+k}, s[{srd}:{srd+3}], s{s_xrow} offen{off} lds")
                if k == 3:
                    a("s_mov_b64 exec, -1")
                    a(f"s_add_u32 s{s_xrow}, s{s_xrow}, {XROW}")
                    a(f"s_add_u32 s{s_iy}, s{s_iy}, 1")
            L.append(ld)
        return L
    def w_dma(j):
        L = []
        def pre():
            if j > 0: wo_calc(j)
            a(f"s_add_u32 m0, s{s_wmb}, {2*j*CH}")
        L.append(pre)
        for k in range(3):
            def ld(k=k):
                off = f" offset:{1024*k}" if k else ""
                e.vmem(f"W{j}", f"buffer_load_dwordx4 v{vWd+k}, s[{sW}:{sW+3}], s{s_wo+j} offen{off} lds")
            L.append(ld)
        return L
    vbt = vAcc
    def bi_loads():
        L = [lambda: None]
        for p in range(3):
            L.append(lambda p=p: e.vmem("BI", f"buffer_load_dwordx4 {q4(vbt+4*p)}, v{vBi}, s[{sBs}:{sBs+3}], 0 offen offset:{64*p}"))
        return L
    def touch_setup():
        a(f"s_lshl_b32 s{s_t0}, s{s_strip}, 4")
        a(f"s_sub_i32 s{s_t0}, s{s_t0}, 1")
        a(f"s_max_i32 s{s_t0}, s{s_t0}, 0")
        a(f"s_mulk_i32 s{s_t0}, 192")
        a(f"v_lshlrev_b32 v{vTch}, {7 if opt.get('t128') else 6}, v0")
        a(f"v_add_u32 v{vTch}, s{s_t0}, v{vTch}")
        a(f"s_lshl1_add_u32 s{s_t0}, s{s_py}, s{s_px}")
        a(f"s_add_u32 s{s_t0}, s{s_t0}, s{s_m0}")
        a(f"s_add_u32 s{s_tch}, s{s_t0}, 4")
    def touch(i):
        def f():
            a(f"s_min_u32 s{s_tch+1}, s{s_tch}, 223")
            a(f"s_mul_i32 s{s_tch+1}, s{s_tch+1}, {XROW}")
            if opt.get('t128'): a("s_mov_b64 exec, 0xfffffff")
            elif opt.get('t54'): a("s_mov_b64 exec, s[90:91]")
            e.vmem("TC", f"buffer_load_dword v{vPf}, v{vTch}, s[{sX}:{sX+3}], s{s_tch+1} offen")
            if opt.get('t128') or opt.get('t54'): a("s_mov_b64 exec, -1")
            a(f"s_add_u32 s{s_tch}, s{s_tch}, 4")
        return [lambda: None, f]
    def grp(name):
        k, n = name[0], name[1:]
        if k == "X": return xrow_dma(int(n))
        if k == "W": return w_dma(int(n))
        if k == "T": return touch(int(n))
        if k == "B": return bi_loads()
        if k == "P": return [lambda: None, pf_issue]
        if k == "O":
            def ot():
                a("s_mov_b64 exec, 0x1fff")
                e.vmem("OT", f"buffer_load_dword v{vPf}, v{vOt}, s[{sO}:{sO+3}], s{s_or} offen")
                a("s_mov_b64 exec, -1")
            return [lambda: None, ot]
        raise ValueError(name)
    def run(L):
        for i, f in enumerate(L):
            f()
            if i == 0: a("s_nop 0")
    def f_reads(r):
        L = []
        for b in range(2):
            for ks in range(3):
                def rd(b=b, ks=ks):
                    e.lds(f"F{r}", f"ds_read_b128 {Ffrag(r, b, ks)}, v{vB+b} offset:{(r % NS)*SLOT + 64*ks}")
                L.append(rd)
        return L
    pre = str(opt.get("pre", "W0,X0,X1,B,W1|W2,X2,W3")).split("|")
    preA = pre[0].split(","); preB = pre[1].split(",") if len(pre) > 1 and pre[1] else []
    for g_ in preA: run(grp(g_))
    stamp(2, 3)
    for s_, size, p in ((sO, OB, 10),):
        a(f"s_mov_b32 s{s_}, s{p}")
        a(f"s_and_b32 s{s_+1}, s{p+1}, 0xffff")
        a(f"s_mov_b32 s{s_+2}, {size}")
        a(f"s_mov_b32 s{s_+3}, 0x20000")
    a(f"v_lshrrev_b32 v{t2}, 4, v0")
    a(f"v_and_b32 v{t3}, 15, v0")
    for b in range(2):
        a(f"v_add_u32 v{t4}, {1-b}, v{t3}")
        a(f"v_mul_u32_u24 v{t5}, 192, v{t4}")
        a(f"v_add_u32 v{t5}, v{t5}, v{vBi}")
        a(f"v_lshlrev_b32 v{t4}, 3, v{t4}")
        a(f"v_and_b32 v{t4}, 32, v{t4}")
        a(f"v_xor_b32 v{t5}, v{t5}, v{t4}")
        a(f"v_add_u32 v{vB+b}, s{s_xb}, v{t5}")
    a(f"v_and_b32 v{t4}, 1, v{t2}")
    a(f"v_mul_u32_u24 v{t4}, 3080, v{t4}")
    a(f"v_lshrrev_b32 v{t5}, 1, v{t2}")
    a(f"v_mul_u32_u24 v{t5}, 1536, v{t5}")
    a(f"v_add_u32 v{t4}, v{t4}, v{t5}")
    a(f"v_lshrrev_b32 v{t5}, 2, v{t3}")
    a(f"v_mul_u32_u24 v{t5}, 192, v{t5}")
    a(f"v_add_u32 v{t4}, v{t4}, v{t5}")
    a(f"v_and_b32 v{t5}, 3, v{t3}")
    a(f"v_lshlrev_b32 v{t5}, 4, v{t5}")
    a(f"v_add_u32 v{vW}, v{t4}, v{t5}")
    a(f"v_add_u32 v{vW+1}, {6*CH}, v{vW}")
    stamp(3, 3)
    touch_setup()
    if opt.get("t54"):
        a("s_mov_b32 s90, -1"); a("s_mov_b32 s91, 0x3fffff")
    def late_setup():
        L = []
        L.append(lambda: a(f"s_lshl1_add_u32 s{s_t0}, s{s_m0}, s{s_py}"))
        L.append(lambda: a(f"s_mulk_i32 s{s_t0}, 448"))
        L.append(lambda: a(f"s_lshl_b32 s{s_t1}, s{s_strip}, 5"))
        L.append(lambda: a(f"s_add_u32 s{s_t0}, s{s_t0}, s{s_t1}"))
        L.append(lambda: a(f"s_add_u32 s{s_t0}, s{s_t0}, s{s_px}"))
        L.append(lambda: a(f"s_mul_i32 s{s_or}, s{s_t0}, 192"))
        L.append(lambda: a(f"s_add_u32 s{s_or+1}, s{s_or}, {OROW2}"))
        L.append(lambda: a(f"s_mov_b32 s{s_o01}, s{s_or}"))
        L.append(lambda: a(f"s_mov_b32 s{s_o01+1}, s{s_or+1}"))
        L.append(lambda: a(f"s_cmp_lt_u32 s{s_band}, 8"))
        L.append(lambda: a(f"s_cselect_b32 s{s_R}, 13, 12"))
        return L
    for f in late_setup(): f()
    a(f"s_mov_b32 s{s_t0}, {OROW2}")
    a(f"v_mul_lo_u32 v{vOt}, s{s_t0}, v0")
    for g_ in preB: run(grp(g_))
    stamp(4, 3)
    if LT:
        a(f"s_lshl_b32 s{s_t0}, s{s_w}, 13")
        a(f"v_lshrrev_b32 v{t4}, 1, v{t3}")
        a(f"v_and_b32 v{t4}, 3, v{t4}")
        a(f"v_xor_b32 v{t4}, v{t4}, v{t2}")
        a(f"v_lshlrev_b32 v{t4}, 4, v{t4}")
        a(f"v_lshlrev_b32 v{t5}, 6, v{t3}")
        a(f"v_add3_u32 v{vTw}, v{t4}, v{t5}, s{s_t0}")
        a(f"v_lshrrev_b32 v{t1}, 2, v0")
        a(f"v_and_b32 v{t4}, 3, v0")
        a(f"v_mul_u32_u24 v{t5}, 384, v{t1}")
        a(f"v_lshl_add_u32 v{vO2}, v{t4}, 4, v{t5}")
        a(f"v_bfe_u32 v{t5}, v{t1}, 1, 2")
        a(f"v_xor_b32 v{t4}, v{t4}, v{t5}")
        a(f"v_lshlrev_b32 v{t4}, 4, v{t4}")
        a(f"v_lshlrev_b32 v{t5}, 6, v{t1}")
        a(f"v_add3_u32 v{vTr}, v{t4}, v{t5}, s{s_t0}")
    a(f"v_mul_u32_u24 v{t4}, 384, v{t3}")
    a(f"v_add_u32 v{vO}, v{t4}, v{vBi}")
    e.wait_vm("BI")
    stamp(5, 3)
    for p in range(3):
        for h in range(2):
            for r in range(4):
                src = vbt + 4*p + (4*h+r)//2
                dst = vBias + 4*(2*p+h) + r
                if r & 1: a(f"v_and_b32 v{dst}, 0xffff0000, v{src}")
                else: a(f"v_lshlrev_b32 v{dst}, 16, v{src}")
    e.wait_vm("X0")
    for f in f_reads(0): f()
    e.wait_vm("X1")
    stamp(6, 3)
    for f in f_reads(1): f()
    free = list(range(NQ))
    def take(): return vAcc + 4*free.pop(0)
    def give(r): free.append((r - vAcc)//4)
    acc = [[take() for t in range(6)] for tile in range(2)]
    LAG = opt.get("lag", 5)
    def rd_half(f, half):
        q, t = divmod(f, 6); p, h = divmod(t, 2)
        off = (q % 6)*CH + half*768 + 64*p + 8*h
        e.lds(f"R{f}", f"ds_read_b64_tr_b16 {whalf(f, half)}, v{vW + q//6} offset:{off}")
    def mf(d, f, bfr, c):
        a(f"v_mfma_f32_16x16x32_bf16 {q4(d)}, {wfrag(f)}, {bfr}, {q4(c)}")
    ex = {}
    def atg(G, f): ex.setdefault(G, []).append(f)
    for item in str(opt.get("inp", "W4@2,W5@10,X3@18,T0@26,T1@30,T2@34,X4@40")).split(","):
        if not item: continue
        name, pos = item.split("@"); pos = int(pos)
        L = grp(name)
        atg(2*pos, L[0])
        step = opt.get("pace", 1)
        for k, f in enumerate(L[1:]): atg(2*(pos + k*step) + 1, f)
    f2 = opt.get("f2pos", 26)
    atg(2*f2, lambda: e.wait_vm("X2"))
    for i, f in enumerate(f_reads(2)): atg(2*(f2+1+i) + 1, f)
    f3 = opt.get("f3pos", 60)
    atg(2*f3, lambda: e.wait_vm("X3"))
    for i, f in enumerate(f_reads(3)): atg(2*(f3+1+i) + 1, f)
    def stage_gate(n):
        if n < 72 and n % 12 == 0:
            e.wait_vm(f"W{n//12}")
            a("s_barrier")
            if n == 0: stamp(3); stamp(7, 3)
            stamp(1 + n//12, 2); stamp(n//12, 7)
    for n in range(LAG):
        stage_gate(n)
        rd_half(n, 0); rd_half(n, 1)
    for m in range(72):
        n = m + LAG
        q, t = divmod(m, 6); aa, b, ks = qabk(q)
        if m == 0: e.wait_lg("F1")
        if m == 36: e.wait_lg("F2")
        e.wait_lg(f"R{m}")
        if m == 0: stamp(4)
        for tile in range(2):
            row = tile + (1 - aa)
            c = (vBias + 4*t) if q == 0 else acc[tile][t]
            mf(acc[tile][t], m, Ffrag(row, b, ks), c)
            if tile == 0: stage_gate(n)
            if n < 72: rd_half(n, tile)
            for f in ex.get(2*m + tile, []): f()
    stamp(5); stamp(7, 2); stamp(6, 7); cstamp(0)
    pkfree = [vPk + 4*i for i in range(NPK)]
    rbfree = [vRb + 4*i for i in range(NRB)]
    tcount = [0]
    def epi_ops(accq, p, tile, slot=None):
        A, B = accq
        lt = LT == 1 or (LT == 2 and tile < opt.get("ltn", 2))
        box = {}
        cv = (lambda t: None) if opt.get("nocvt") else a
        def c0():
            box["pk"] = pkfree.pop(0)
            cv(f"v_cvt_pk_bf16_f32 v{box['pk']}, v{A}, v{A+1}")
        def c1(): cv(f"v_cvt_pk_bf16_f32 v{box['pk']+1}, v{A+2}, v{A+3}"); give(A)
        def c2(): cv(f"v_cvt_pk_bf16_f32 v{box['pk']+2}, v{B}, v{B+1}")
        def c3(): cv(f"v_cvt_pk_bf16_f32 v{box['pk']+3}, v{B+2}, v{B+3}"); give(B)
        off = f" offset:{64*p}" if p else ""
        fl = (" " + stf) if stf else ""
        def wr():
            box["buf"] = (6 + tcount[0] % 2)*1024 if slot is None else slot*1024
            tcount[0] += 1
            box["id"] = f"T{tcount[0]}"
            e.lds(box["id"] + "w", f"ds_write_b128 v{vTw}, {q4(box['pk'])} offset:{box['buf']}")
            pkfree.append(box["pk"])
        def rd():
            box["rb"] = rbfree.pop(0)
            e.lds(box["id"] + "r", f"ds_read_b128 {q4(box['rb'])}, v{vTr} offset:{box['buf']}")
        def wt(): e.wait_lg(box["id"] + "r")
        def st():
            src = box["rb"] if lt else box["pk"]
            if not opt.get("nost"):
                so = (s_o01 + tile) if tile < 2 else (s_or + tile % 4)
                e.vmem("ST", f"buffer_store_dwordx4 {q4(src)}, v{vO2 if lt else vO}, s[{sO}:{sO+3}], s{so} offen{off}{fl}")
            (rbfree if lt else pkfree).append(src)
        if lt: return [c0, c1], [c2, c3], [wr, rd, wt, st]
        return [c0, c1], [c2, c3], [st]
    carry = []
    for tile in range(2):
        for p in range(3):
            c01, c23, fin = epi_ops((acc[tile][2*p], acc[tile][2*p+1]), p, tile, slot=3*tile+p)
            carry.append((c01 + c23, fin))
    FINOFF = ints(opt.get("finoff", "10,13,19,20"))
    def steady(i, carry_sched):
        ex = {}
        def put(n, f): ex.setdefault(n, []).append(f)
        for n, L in carry_sched.items():
            for f in L: put(n, f)
        for n, f in deferred.get(i, []): put(n, f)
        put(1, lambda: a(f"s_add_u32 s{s_or + i % 4}, s{s_or + (i-1) % 4}, {OROW2}"))
        if i == 2: put(4, lambda: e.wait_lg("F3"))
        r = i + 2
        DD = opt.get("dd", 3)
        rows = [x for x in (([5, 6] if i == 2 else [i + 4]) if DD == 4 else [i + 3]) if x <= 13]
        if not opt.get("nodma"):
            dp0 = ints(opt.get("dmapos", "2,4,26,28"))
            for ri, r_ in enumerate(rows):
                L = xrow_dma(r_)
                dp = dp0
                if i == 2: dp = ints(opt.get("dma2", "50,55,60,65")) if ri == 0 else [62, 64, 66, 68]
                put(dp[0] - 1, L[0])
                for k in range(4): put(dp[k], L[1+k])
        if r <= 13:
            if not opt.get("nodma") or r < 5: put(opt.get("xwpos", 40), lambda: e.wait_vm(f"X{r}"))
            rp = ints(opt.get("rdpos", "41,42,43,50,51,52"))
            for k, f in enumerate(f_reads(r)): put(rp[k], f)
            put(66, lambda: e.wait_lg(f"F{r}"))
        accs = []
        nxt = {}
        for t in range(6):
            d = take(); accs.append(d)
            for q in range(12):
                n = 12*t + q
                aa, b, ks = qabk(q)
                row = i + (1 - aa)
                c = (vBias + 4*t) if q == 0 else d
                if PM == 6 and i == opt.get("ptile", 2) and q == 0: stamp(t, 6)
                if PM == 6 and i == opt.get("ptile", 2) + 1 and n == 0: stamp(6, 6)
                if PM == 6 and i == opt.get("ptile", 2) + 1 and n == 36: stamp(7, 6)
                mf(d, q*6 + t, Ffrag(row, b, ks), c)
                for f in ex.get(n, []): f()
            if t % 2 == 1:
                p = t//2
                c01, c23, fin = epi_ops((accs[t-1], accs[t]), p, i)
                base = 12*t + 12
                tgt = [(base + 0, c01[0]), (base + 1, c01[1]), (base + 8, c23[0]), (base + 9, c23[1])]
                tgt += [(base + (FINOFF[k] if len(fin) > 1 else 10), f) for k, f in enumerate(fin)]
                for n_, f in tgt:
                    if n_ < 72: put(n_, f)
                    else: nxt.setdefault(n_ - 72, []).append(f)
        return nxt
    cs = {}
    deferred = {}
    cstep = opt.get("cstep", 6)
    SPREAD = ints(opt.get("spread", "2,3,4,5,6,7"))
    for k, (cv_, fin) in enumerate(carry):
        b0 = cstep*k
        for j, f in enumerate(cv_): cs.setdefault(b0 + j, []).append(f)
        if len(fin) == 1:
            cs.setdefault(b0 + 4, []).append(fin[0])
            continue
        cs.setdefault(b0 + 4, []).append(fin[0])
        tl_ = SPREAD[k]
        nth = len([1 for kk in range(k) if SPREAD[kk] == tl_])
        p0 = ints(opt.get("defpos", "40,16,64"))[nth]
        if tl_ == 2: p0 = max(p0, b0 + 6)
        deferred.setdefault(tl_, []).extend([(p0, fin[1]), (p0 + 6, fin[2]), (p0 + 7, fin[3])])
    def tail(em_carry):
        a("s_nop 7")
        for n in sorted(em_carry):
            for f in em_carry[n]: f()
    def prof_dump(em):
        if not T0: return
        b = em.a
        if opt.get("dbg"):
            b("s_waitcnt vmcnt(0)")
            b(f"s_memrealtime s[{70+14}:{71+14}]")
            b("s_load_dwordx2 s[4:5], s[0:1], 32")
            b("s_waitcnt lgkmcnt(0)")
            b("s_mov_b32 s8, s4"); b("s_and_b32 s9, s5, 0xffff"); b("s_mov_b32 s10, 256"); b("s_mov_b32 s11, 0x20000")
            b("v_mov_b32 v1, 0")
            b(f"v_writelane_b32 v1, s84, 0")
            b("s_not_b32 s6, s70")
            b(f"v_writelane_b32 v1, s6, 1")
            for k, st_ in enumerate([1, 3, 4, 5, 6, 7]):
                b(f"s_sub_u32 s6, s{70+2*st_}, s70")
                b(f"v_writelane_b32 v1, s6, {2+k}")
            b(f"s_lshl_b32 s7, s2, 2"); b(f"s_add_u32 s7, s7, s{s_w}")
            b("s_cmp_eq_u32 s7, 0")
            for k, st_ in enumerate([1, 3, 4, 5, 6, 7]):
                b(f"s_sub_u32 s6, s{70+2*st_}, s70")
                b("s_cselect_b32 s6, s6, 0") if False else None
            b("s_cmp_eq_u32 s7, 0")
            b("s_cselect_b32 s90, -1, 0")
            for k, st_ in enumerate([1, 3, 4, 5, 6, 7]):
                b(f"s_sub_u32 s6, s{70+2*st_}, s70")
                b("s_and_b32 s6, s6, s90")
                b(f"v_writelane_b32 v1, s6, {8+k}")
            b("s_sub_u32 s86, s88, s86")
            b(f"v_writelane_b32 v1, s86, 14")
            b("v_lshlrev_b32 v3, 2, v0")
            b("v_cmp_gt_u32 vcc, 16, v0")
            b("s_and_saveexec_b64 s[12:13], vcc")
            b("buffer_atomic_umax v1, v3, s[8:11], 0 offen")
            b("s_waitcnt vmcnt(0)")
            return
        b("s_waitcnt vmcnt(0)")
        if PM == 1: b(f"s_memrealtime s[{70+14}:{71+14}]")
        b("s_waitcnt lgkmcnt(0)")
        b("s_load_dwordx2 s[4:5], s[0:1], 40")
        b("s_waitcnt lgkmcnt(0)")
        b("s_mov_b32 s8, s4"); b("s_and_b32 s9, s5, 0xffff"); b("s_mov_b32 s10, 0x10000000"); b("s_mov_b32 s11, 0x20000")
        b("v_mov_b32 v1, 0")
        for i in range(8): b(f"v_writelane_b32 v1, s{70+2*i}, {i}")
        b(f"v_writelane_b32 v1, s{s_R}, 14")
        b("s_sub_u32 s86, s88, s86")
        b(f"v_writelane_b32 v1, s86, 13")
        b("s_getreg_b32 s87, hwreg(HW_REG_XCC_ID)")
        b(f"v_writelane_b32 v1, s87, 12")
        b(f"s_lshl_b32 s6, s2, 2"); b(f"s_add_u32 s6, s6, s{s_w}"); b("s_lshl_b32 s6, s6, 6")
        b("v_lshlrev_b32 v3, 2, v0")
        b("v_cmp_gt_u32 vcc, 16, v0")
        b("s_and_saveexec_b64 s[12:13], vcc")
        b("buffer_store_dword v1, v3, s[8:11], s6 offen")
        b("s_waitcnt vmcnt(0)")
    nxt = cs
    saved = None
    tl = ints(opt.get("tl", "2,3,4,5,6,8,10"))
    for i in range(2, 13):
        if i == 12:
            a(f"s_cmp_eq_u32 s{s_R}, 12")
            a("s_cbranch_scc1 L_tail12")
            saved = (e.clone(), dict(nxt), list(pkfree), list(rbfree), tcount[0])
        if i in tl: stamp(1 + tl.index(i), 5)
        if i == 3: stamp(7, 7)
        nxt = steady(i, nxt)
    stamp(6); cstamp(1)
    tail(nxt)
    prof_dump(e)
    a("s_endpgm")
    em0, nx0, pk0, rb0, tc0 = saved
    L_main = e.L
    e.L = []; e.vm = em0.vm; e.lg = em0.lg; e.vm_done = em0.vm_done; e.lg_done = em0.lg_done
    pkfree[:] = pk0; rbfree[:] = rb0; tcount[0] = tc0
    e.lab("L_tail12")
    stamp(6); cstamp(1)
    tail(nx0)
    prof_dump(e)
    e.lab("L_end")
    a("s_endpgm")
    e.lab("L_codeend")
    body = "\n".join(L_main + e.L)
    hdr = f"""; ConvTranspose2d(k=4, s=2, p=1), NHWC bf16, 224x224x96 -> 448x448x96  (generated by my own script)
; @launch grid=(256,1,1) block=(256,1,1) lds={LDS}
.amdgcn_target "amdgcn-amd-amdhsa--gfx950"
.text
.globl {KNAME}
.p2align 8
.type {KNAME},@function
{KNAME}:
{body}
.section .rodata,"a"
.p2align 6
.amdhsa_kernel {KNAME}
  .amdhsa_next_free_vgpr 512
  .amdhsa_next_free_sgpr 96
  .amdhsa_accum_offset 256
  .amdhsa_group_segment_fixed_size 0
  .amdhsa_kernarg_size 48
  .amdhsa_user_sgpr_count 2
  .amdhsa_user_sgpr_kernarg_segment_ptr 1
  .amdhsa_system_sgpr_workgroup_id_x 1
.end_amdhsa_kernel
"""
    return hdr

if __name__ == "__main__":
    import mk
    out = sys.argv[1] if len(sys.argv) > 1 else "k5.s"
    opt = {}
    for x in sys.argv[2:]:
        k, v = x.split("=")
        opt[k] = int(v) if v.lstrip("-").isdigit() else v
    open(out, "w").write(gen(opt))
    print(mk.build(out))
```

```python
import sys
KNAME = "standalone__transposed_strided__vision_kernel"
XB = 9633792; WB = 294912; OB = 38535168
XROW = 224*192
OROW2 = 2*448*192
CH = 6160
XBASE = 73984
NS = 5
SLOT = 4096
LDS = XBASE + 4*NS*SLOT

class Em:
    def __init__(s):
        s.L = []; s.vm = []; s.lg = []; s.vm_done = 0; s.lg_done = 0
    def clone(s):
        e = Em(); e.vm = list(s.vm); e.lg = list(s.lg); e.vm_done = s.vm_done; e.lg_done = s.lg_done
        return e
    def a(s, t): s.L.append("    " + t)
    def lab(s, t): s.L.append(t + ":")
    def vmem(s, tag, t): s.a(t); s.vm.append(tag)
    def lds(s, tag, t): s.a(t); s.lg.append(tag)
    def wait_vm(s, tag):
        idx = max(i for i, x in enumerate(s.vm) if x == tag) + 1
        if idx <= s.vm_done: return
        n = len(s.vm) - idx
        assert n <= 63
        s.a(f"s_waitcnt vmcnt({n})"); s.vm_done = idx
    def wait_lg(s, tag):
        idx = max(i for i, x in enumerate(s.lg) if x == tag) + 1
        if idx <= s.lg_done: return
        n = len(s.lg) - idx
        assert n <= 15, (n, tag)
        s.a(f"s_waitcnt lgkmcnt({n})"); s.lg_done = idx

def ints(x): return [int(v) for v in str(x).split(",")]

def gen(opt):
    stf = opt.get("stflags", "sc1")
    T0 = opt.get("prof", False)
    PM = opt.get("pm", 1)
    LT = opt.get("lt", 2)
    e = Em(); a = e.a
    V = 0
    def alloc(n, al=1):
        nonlocal V
        V = (V + al - 1)//al*al
        r = V; V += n; return r
    v_tid = alloc(1)
    vT = alloc(5)
    vPf = alloc(1)
    vX = alloc(4)
    vWd = alloc(3)
    vB = alloc(2)
    vW = alloc(2)
    vO = alloc(1)
    vBi = alloc(1)
    vTch = alloc(1)
    vOt = alloc(1)
    vD = alloc(3)
    vO2 = alloc(1)
    vTw = alloc(1, 2); vTr = alloc(1)
    vF = [alloc(24, 4) for _ in range(3)]
    NQ = 14
    vAcc = alloc(4*NQ, 4)
    vBias = alloc(24, 4)
    NPK = 4
    vPk = alloc(4*NPK, 4)
    NRB = 3
    vRb = alloc(4*NRB, 4)
    vWv = alloc(32, 4)
    assert V <= 256, V
    def wfrag(f):
        return (f"a[{4*f}:{4*f+3}]" if f < 64 else f"v[{vWv+4*(f-64)}:{vWv+4*(f-64)+3}]")
    def whalf(f, h):
        if f < 64: return f"a[{4*f+2*h}:{4*f+2*h+1}]"
        r = vWv+4*(f-64)+2*h
        return f"v[{r}:{r+1}]"
    def Ffrag(row, b, ks):
        r = vF[row % 3] + 4*(b*3+ks)
        return f"v[{r}:{r+3}]"
    def q4(r): return f"v[{r}:{r+3}]"
    sX, sX2, sW, sBs, sO = 12, 16, 20, 24, 28
    s_w, s_wh, s_o, s_px, s_py, s_strip, s_band, s_m0, s_R = 32, 33, 34, 35, 36, 37, 38, 39, 40
    s_t0, s_t1, s_t2, s_t3 = 41, 42, 43, 44
    s_xrow, s_iy, s_xb, s_pb, s_wmb = 45, 46, 47, 48, 49
    s_wo = 50
    s_or = 56
    s_o01 = 92
    s_mk = 60
    s_pc = 66
    s_tch = 68
    def stamp(i, pm=1):
        if T0 and pm == PM: a(f"s_mem{'time' if pm >= 6 else 'realtime'} s[{70+2*i}:{71+2*i}]")
    def cstamp(i):
        if T0: a(f"s_memtime s[{86+2*i}:{87+2*i}]")
    def qabk(q):
        aa = 1 - q//6; b = (q % 6)//3; ks = q % 3
        return aa, b, ks
    def wconst(q):
        aa, b, ks = qabk(q)
        return (8*aa + 2*b)*18432 + ks*6144
    t1, t2, t3, t4, t5 = [vT+i for i in range(5)]
    for pm in (1, 2, 3, 5): stamp(0, pm)
    a("s_cmp_ge_u32 s2, 256")
    a("s_cbranch_scc1 L_end")
    a("s_load_dwordx4 s[4:7], s[0:1], 0")
    a("s_load_dwordx4 s[8:11], s[0:1], 16")
    PFP = opt.get("pfpos", 0)
    def pf_addr():
        a(f"s_getpc_b64 s[{s_pc}:{s_pc+1}]")
        e.lab("L_pc")
        a(f"v_lshlrev_b32 v{t1}, 6, v0")
        a(f"v_min_u32 v{t1}, L_codeend-L_pc-4, v{t1}")
        a(f"v_mov_b32 v{vTw+1}, s{s_pc+1}")
        a(f"v_add_co_u32 v{vTw}, vcc, s{s_pc}, v{t1}")
    def pf_issue():
        e.vmem("PF", f"global_load_dword v{vPf}, v[{vTw}:{vTw+1}], off")
    assert vTw % 2 == 0 and vTr == vTw + 1
    pf_addr()
    a(f"v_lshrrev_b32 v{t4}, 6, v0")
    a(f"v_and_b32 v0, 63, v0")
    a(f"v_addc_co_u32 v{vTw+1}, vcc, 0, v{vTw+1}, vcc")
    a(f"v_readfirstlane_b32 s{s_w}, v{t4}")
    if PFP == 0: pf_issue()
    a(f"s_and_b32 s{s_t0}, s2, 7")
    a(f"s_lshr_b32 s{s_t1}, s2, 5")
    a(f"s_lshl3_add_u32 s{s_t1}, s{s_t1}, s{s_t0}")
    a(f"s_cmp_ge_u32 s{s_t1}, 63")
    a("s_cbranch_scc1 L_end")
    a(f"s_bfe_u32 s{s_px}, s2, 0x10003")
    a(f"s_bfe_u32 s{s_py}, s2, 0x10004")
    a(f"s_lshl2_add_u32 s{s_t1}, s{s_t1}, s{s_w}")
    a(f"s_mul_i32 s{s_band}, s{s_t1}, 4682")
    a(f"s_lshr_b32 s{s_band}, s{s_band}, 16")
    a(f"s_mul_i32 s{s_t0}, s{s_band}, 14")
    a(f"s_sub_u32 s{s_strip}, s{s_t1}, s{s_t0}")
    a(f"s_min_u32 s{s_t0}, s{s_band}, 8")
    a(f"s_mul_i32 s{s_m0}, s{s_band}, 12")
    a(f"s_add_u32 s{s_m0}, s{s_m0}, s{s_t0}")
    a(f"s_add_u32 s{s_iy}, s{s_m0}, s{s_py}")
    a(f"s_sub_u32 s{s_iy}, s{s_iy}, 1")
    a(f"s_mul_i32 s{s_xrow}, s{s_iy}, {XROW}")
    a(f"s_lshl4_add_u32 s{s_t0}, s{s_strip}, s{s_px}")
    a(f"s_sub_u32 s{s_t1}, s{s_t0}, 1")
    a(f"s_mulk_i32 s{s_t1}, 192")
    a(f"s_cmp_eq_u32 s{s_t0}, 0")
    a(f"s_cselect_b32 s{s_t2}, 12, 0")
    a(f"s_cmpk_gt_u32 s{s_t0}, 208")
    a(f"s_cselect_b32 s{s_t3}, 0, 12")
    a(f"s_mov_b32 s{s_mk}, 0")
    a(f"s_mov_b32 s{s_mk+1}, 0xffff0000")
    a(f"s_mov_b32 s{s_mk+2}, -1")
    a(f"s_mov_b32 s{s_mk+3}, 0")
    a(f"s_mov_b32 s{s_mk+4}, 0xffff0000")
    a(f"s_mov_b32 s{s_mk+5}, -1")
    a(f"v_lshlrev_b32 v{vWd}, 4, v0")
    a(f"v_xor_b32 v{t1}, 32, v{vWd}")
    a(f"v_add_u32 v{t1}, s{s_t1}, v{t1}")
    a(f"v_add_u32 v{vX+3}, s{s_t1}, v{vWd}")
    a(f"v_bfrev_b32 v{t3}, 1")
    a(f"v_cmp_gt_u32 vcc, s{s_t2}, v0")
    a(f"v_cndmask_b32 v{vX}, v{vX+3}, v{t1}, s[{s_mk}:{s_mk+1}]")
    a(f"v_cndmask_b32 v{vX+1}, v{vX+3}, v{t1}, s[{s_mk+2}:{s_mk+3}]")
    a(f"v_cndmask_b32 v{vX}, v{vX}, v{t3}, vcc")
    a(f"v_cmp_le_u32 vcc, s{s_t3}, v0")
    a(f"v_cndmask_b32 v{vX+2}, v{vX+3}, v{t1}, s[{s_mk+4}:{s_mk+5}]")
    a(f"v_lshrrev_b32 v{t2}, 5, v0")
    a(f"v_cndmask_b32 v{vX+3}, v{vX+3}, v{t3}, vcc")
    a(f"v_mul_u32_u24 v{t2}, 1536, v{t2}")
    a(f"v_add_u32 v{vWd+1}, v{vWd}, v{t2}")
    a(f"v_add_u32 v{vWd+2}, 1536, v{vWd}")
    a(f"s_lshr_b32 s{s_wh}, s{s_w}, 1")
    a(f"s_and_b32 s{s_o}, s{s_w}, 1")
    a(f"s_lshl2_add_u32 s{s_t0}, s{s_py}, s{s_px}")
    a(f"s_sub_u32 s{s_t0}, 5, s{s_t0}")
    a(f"s_mul_i32 s{s_pb}, s{s_t0}, 18432")
    a(f"s_mul_i32 s{s_t0}, s{s_o}, 1536")
    a(f"s_add_u32 s{s_pb}, s{s_pb}, s{s_t0}")
    a(f"s_mul_i32 s{s_t2}, s{s_o}, 3080")
    a(f"s_mul_i32 s{s_t3}, s{s_wh}, {CH}")
    a(f"s_add_u32 s{s_wmb}, s{s_t2}, s{s_t3}")
    a(f"s_mul_i32 s{s_xb}, s{s_w}, {NS*SLOT}")
    a(f"s_add_u32 s{s_xb}, s{s_xb}, {XBASE}")
    def wo_calc(j):
        c0, c1 = wconst(2*j), wconst(2*j+1)
        a(f"s_cmp_eq_u32 s{s_wh}, 0")
        a(f"s_mov_b32 s{s_t0}, {c1}")
        a(f"s_cselect_b32 s{s_t0}, {c0}, s{s_t0}")
        a(f"s_add_u32 s{s_wo+j}, s{s_t0}, s{s_pb}")
    wo_calc(0)
    for s_, size in ((sX, XB), (sW, WB), (sBs, 192)):
        a(f"s_mov_b32 s{s_+2}, {size}")
        a(f"s_mov_b32 s{s_+3}, 0x20000")
    a(f"s_mov_b32 s{sX2+3}, 0x20000")
    a(f"v_lshrrev_b32 v{t2}, 4, v0")
    a(f"v_lshlrev_b32 v{vBi}, 4, v{t2}")
    a("s_waitcnt lgkmcnt(0)")
    stamp(1); stamp(1, 3)
    for s_, p in ((sW, 6), (sX2, 4), (sBs, 8), (sX, 4)):
        a(f"s_mov_b32 s{s_}, s{p}")
        a(f"s_and_b32 s{s_+1}, s{p+1}, 0xffff")

    def xrow_dma(r):
        L = []
        chk = r in (0, 12, 13)
        srd = sX2 if chk else sX
        def pre():
            if chk:
                a(f"s_cmp_lt_u32 s{s_iy}, 224")
                a(f"s_cselect_b32 s{sX2+2}, {XB}, 0")
            a(f"s_add_u32 m0, s{s_xb}, {(r % NS)*SLOT}")
        L.append(pre)
        for k in range(4):
            def ld(k=k):
                off = f" offset:{1024*k}" if k else ""
                if k == 3: a("s_mov_b64 exec, 0xfff")
                e.vmem(f"X{r}", f"buffer_load_dwordx4 v{vX+k}, s[{srd}:{srd+3}], s{s_xrow} offen{off} lds")
                if k == 3:
                    a("s_mov_b64 exec, -1")
                    a(f"s_add_u32 s{s_xrow}, s{s_xrow}, {XROW}")
                    a(f"s_add_u32 s{s_iy}, s{s_iy}, 1")
            L.append(ld)
        return L
    def w_dma(j):
        L = []
        def pre():
            if j > 0: wo_calc(j)
            a(f"s_add_u32 m0, s{s_wmb}, {2*j*CH}")
        L.append(pre)
        for k in range(3):
            def ld(k=k):
                off = f" offset:{1024*k}" if k else ""
                e.vmem(f"W{j}", f"buffer_load_dwordx4 v{vWd+k}, s[{sW}:{sW+3}], s{s_wo+j} offen{off} lds")
            L.append(ld)
        return L
    vbt = vAcc
    def bi_loads():
        L = [lambda: None]
        for p in range(3):
            L.append(lambda p=p: e.vmem("BI", f"buffer_load_dwordx4 {q4(vbt+4*p)}, v{vBi}, s[{sBs}:{sBs+3}], 0 offen offset:{64*p}"))
        return L
    def touch_setup():
        a(f"s_lshl_b32 s{s_t0}, s{s_strip}, 4")
        a(f"s_sub_i32 s{s_t0}, s{s_t0}, 1")
        a(f"s_max_i32 s{s_t0}, s{s_t0}, 0")
        a(f"s_mulk_i32 s{s_t0}, 192")
        a(f"v_lshlrev_b32 v{vTch}, {7 if opt.get('t128') else 6}, v0")
        a(f"v_add_u32 v{vTch}, s{s_t0}, v{vTch}")
        a(f"s_lshl1_add_u32 s{s_t0}, s{s_py}, s{s_px}")
        a(f"s_add_u32 s{s_t0}, s{s_t0}, s{s_m0}")
        a(f"s_add_u32 s{s_tch}, s{s_t0}, 4")
    def touch(i):
        def f():
            a(f"s_min_u32 s{s_tch+1}, s{s_tch}, 223")
            a(f"s_mul_i32 s{s_tch+1}, s{s_tch+1}, {XROW}")
            if opt.get('t128'): a("s_mov_b64 exec, 0xfffffff")
            elif opt.get('t54'): a("s_mov_b64 exec, s[90:91]")
            e.vmem("TC", f"buffer_load_dword v{vPf}, v{vTch}, s[{sX}:{sX+3}], s{s_tch+1} offen")
            if opt.get('t128') or opt.get('t54'): a("s_mov_b64 exec, -1")
            a(f"s_add_u32 s{s_tch}, s{s_tch}, 4")
        return [lambda: None, f]
    def grp(name):
        k, n = name[0], name[1:]
        if k == "X": return xrow_dma(int(n))
        if k == "W": return w_dma(int(n))
        if k == "T": return touch(int(n))
        if k == "B": return bi_loads()
        if k == "D":
            n_ = int(n)
            def dt():
                nl = (18, 28, 63)[n_]
                a(f"s_mov_b32 exec_lo, {hex((1 << min(nl, 32)) - 1)}")
                a(f"s_mov_b32 exec_hi, {hex((1 << max(nl - 32, 0)) - 1)}")
                srd = sW if n_ == 0 else sX
                e.vmem("TD", f"buffer_load_dword v{vPf}, v{vD+n_}, s[{srd}:{srd+3}], 0 offen")
                a("s_mov_b64 exec, -1")
            return [lambda: None, dt]
        if k == "P": return [lambda: None, pf_issue]
        if k == "O":
            def ot():
                a("s_mov_b64 exec, 0x1fff")
                e.vmem("OT", f"buffer_load_dword v{vPf}, v{vOt}, s[{sO}:{sO+3}], s{s_or} offen")
                a("s_mov_b64 exec, -1")
            return [lambda: None, ot]
        raise ValueError(name)
    def run(L):
        for i, f in enumerate(L):
            f()
            if i == 0: a("s_nop 0")
    def f_reads(r):
        L = []
        for b in range(2):
            for ks in range(3):
                def rd(b=b, ks=ks):
                    e.lds(f"F{r}", f"ds_read_b128 {Ffrag(r, b, ks)}, v{vB+b} offset:{(r % NS)*SLOT + 64*ks}")
                L.append(rd)
        return L
    pre = str(opt.get("pre", "W0,X0,X1,B,W1|W2,X2,W3")).split("|")
    preA = pre[0].split(","); preB = pre[1].split(",") if len(pre) > 1 and pre[1] else []
    for g_ in preA: run(grp(g_))
    stamp(2, 3)
    for s_, size, p in ((sO, OB, 10),):
        a(f"s_mov_b32 s{s_}, s{p}")
        a(f"s_and_b32 s{s_+1}, s{p+1}, 0xffff")
        a(f"s_mov_b32 s{s_+2}, {size}")
        a(f"s_mov_b32 s{s_+3}, 0x20000")
    a(f"v_lshrrev_b32 v{t2}, 4, v0")
    a(f"v_and_b32 v{t3}, 15, v0")
    for b in range(2):
        a(f"v_add_u32 v{t4}, {1-b}, v{t3}")
        a(f"v_mul_u32_u24 v{t5}, 192, v{t4}")
        a(f"v_add_u32 v{t5}, v{t5}, v{vBi}")
        a(f"v_lshlrev_b32 v{t4}, 3, v{t4}")
        a(f"v_and_b32 v{t4}, 32, v{t4}")
        a(f"v_xor_b32 v{t5}, v{t5}, v{t4}")
        a(f"v_add_u32 v{vB+b}, s{s_xb}, v{t5}")
    a(f"v_and_b32 v{t4}, 1, v{t2}")
    a(f"v_mul_u32_u24 v{t4}, 3080, v{t4}")
    a(f"v_lshrrev_b32 v{t5}, 1, v{t2}")
    a(f"v_mul_u32_u24 v{t5}, 1536, v{t5}")
    a(f"v_add_u32 v{t4}, v{t4}, v{t5}")
    a(f"v_lshrrev_b32 v{t5}, 2, v{t3}")
    a(f"v_mul_u32_u24 v{t5}, 192, v{t5}")
    a(f"v_add_u32 v{t4}, v{t4}, v{t5}")
    a(f"v_and_b32 v{t5}, 3, v{t3}")
    a(f"v_lshlrev_b32 v{t5}, 4, v{t5}")
    a(f"v_add_u32 v{vW}, v{t4}, v{t5}")
    a(f"v_add_u32 v{vW+1}, {6*CH}, v{vW}")
    stamp(3, 3)
    touch_setup()
    def dedupe_setup():
        a(f"s_lshr_b32 s{s_t0}, s2, 3")
        a(f"s_lshl2_add_u32 s{s_t0}, s{s_t0}, s{s_w}")
        a(f"s_mul_i32 s{s_t0}, s{s_t0}, {18*128}")
        a(f"v_lshlrev_b32 v{t4}, 7, v0")
        a(f"v_add_u32 v{vD}, s{s_t0}, v{t4}")
        a(f"v_mul_u32_u24 v{t4}, 9363, v0")
        a(f"v_lshrrev_b32 v{t4}, 16, v{t4}")
        a(f"v_mul_u32_u24 v{t5}, 7, v{t4}")
        a(f"v_sub_u32 v{t5}, v0, v{t5}")
        a(f"s_lshl1_add_u32 s{s_t0}, s{s_py}, s{s_px}")
        a(f"s_mul_i32 s{s_t0}, s{s_t0}, 7")
        a(f"s_mul_i32 s{s_t1}, s{s_strip}, 24")
        a(f"s_add_u32 s{s_t0}, s{s_t0}, s{s_t1}")
        a(f"s_sub_u32 s{s_t0}, s{s_t0}, 2")
        a(f"v_add_u32 v{t5}, s{s_t0}, v{t5}")
        a(f"v_max_i32 v{t5}, 0, v{t5}")
        a(f"v_lshlrev_b32 v{t5}, 7, v{t5}")
        for kk, r0 in ((1, 1), (2, 5)):
            a(f"s_add_u32 s{s_t1}, s{s_m0}, {r0}")
            a(f"v_add_u32 v{t1}, s{s_t1}, v{t4}")
            a(f"v_min_u32 v{t1}, 223, v{t1}")
            a(f"s_mov_b32 s{s_t2}, {XROW}")
            a(f"v_mul_lo_u32 v{t1}, v{t1}, s{s_t2}")
            a(f"v_add_u32 v{vD+kk}, v{t1}, v{t5}")
    if "D" in str(opt.get("pre", "")) + str(opt.get("inp", "")): dedupe_setup()
    if opt.get("t54"):
        a("s_mov_b32 s90, -1"); a("s_mov_b32 s91, 0x3fffff")
    def late_setup():
        L = []
        L.append(lambda: a(f"s_lshl1_add_u32 s{s_t0}, s{s_m0}, s{s_py}"))
        L.append(lambda: a(f"s_mulk_i32 s{s_t0}, 448"))
        L.append(lambda: a(f"s_lshl_b32 s{s_t1}, s{s_strip}, 5"))
        L.append(lambda: a(f"s_add_u32 s{s_t0}, s{s_t0}, s{s_t1}"))
        L.append(lambda: a(f"s_add_u32 s{s_t0}, s{s_t0}, s{s_px}"))
        L.append(lambda: a(f"s_mul_i32 s{s_or}, s{s_t0}, 192"))
        L.append(lambda: a(f"s_add_u32 s{s_or+1}, s{s_or}, {OROW2}"))
        L.append(lambda: a(f"s_mov_b32 s{s_o01}, s{s_or}"))
        L.append(lambda: a(f"s_mov_b32 s{s_o01+1}, s{s_or+1}"))
        L.append(lambda: a(f"s_add_u32 s{s_o01+2}, s{s_or+1}, {OROW2}"))
        L.append(lambda: a(f"s_cmp_lt_u32 s{s_band}, 8"))
        L.append(lambda: a(f"s_cselect_b32 s{s_R}, 13, 12"))
        return L
    for f in late_setup(): f()
    a(f"s_mov_b32 s{s_t0}, {OROW2}")
    a(f"v_mul_lo_u32 v{vOt}, s{s_t0}, v0")
    for g_ in preB: run(grp(g_))
    stamp(4, 3)
    if LT:
        a(f"s_mul_i32 s{s_t0}, s{s_w}, 11264")
        a(f"v_lshrrev_b32 v{t4}, 1, v{t3}")
        a(f"v_and_b32 v{t4}, 3, v{t4}")
        a(f"v_xor_b32 v{t4}, v{t4}, v{t2}")
        a(f"v_lshlrev_b32 v{t4}, 4, v{t4}")
        a(f"v_lshlrev_b32 v{t5}, 6, v{t3}")
        a(f"v_add3_u32 v{vTw}, v{t4}, v{t5}, s{s_t0}")
        a(f"v_lshrrev_b32 v{t1}, 2, v0")
        a(f"v_and_b32 v{t4}, 3, v0")
        a(f"v_mul_u32_u24 v{t5}, 384, v{t1}")
        a(f"v_lshl_add_u32 v{vO2}, v{t4}, 4, v{t5}")
        a(f"v_bfe_u32 v{t5}, v{t1}, 1, 2")
        a(f"v_xor_b32 v{t4}, v{t4}, v{t5}")
        a(f"v_lshlrev_b32 v{t4}, 4, v{t4}")
        a(f"v_lshlrev_b32 v{t5}, 6, v{t1}")
        a(f"v_add3_u32 v{vTr}, v{t4}, v{t5}, s{s_t0}")
    a(f"v_mul_u32_u24 v{t4}, 384, v{t3}")
    a(f"v_add_u32 v{vO}, v{t4}, v{vBi}")
    e.wait_vm("BI")
    stamp(5, 3)
    for p in range(3):
        for h in range(2):
            for r in range(4):
                src = vbt + 4*p + (4*h+r)//2
                dst = vBias + 4*(2*p+h) + r
                if r & 1: a(f"v_and_b32 v{dst}, 0xffff0000, v{src}")
                else: a(f"v_lshlrev_b32 v{dst}, 16, v{src}")
    e.wait_vm("X0")
    for f in f_reads(0): f()
    e.wait_vm("X1")
    stamp(6, 3)
    for f in f_reads(1): f()
    free = list(range(NQ))
    def take(): return vAcc + 4*free.pop(0)
    def give(r): free.append((r - vAcc)//4)
    acc = [[take() for t in range(6)] for tile in range(2)]
    LAG = opt.get("lag", 5)
    def rd_half(f, half):
        q, t = divmod(f, 6); p, h = divmod(t, 2)
        off = (q % 6)*CH + half*768 + 64*p + 8*h
        e.lds(f"R{f}", f"ds_read_b64_tr_b16 {whalf(f, half)}, v{vW + q//6} offset:{off}")
    def mf(d, f, bfr, c):
        a(f"v_mfma_f32_16x16x32_bf16 {q4(d)}, {wfrag(f)}, {bfr}, {q4(c)}")
    ex = {}
    def atg(G, f): ex.setdefault(G, []).append(f)
    for item in str(opt.get("inp", "W4@2,W5@10,X3@18,T0@26,T1@30,T2@34,X4@40")).split(","):
        if not item: continue
        name, pos = item.split("@"); pos = int(pos)
        L = grp(name)
        atg(2*pos, L[0])
        step = opt.get("pace", 1)
        for k, f in enumerate(L[1:]): atg(2*(pos + k*step) + 1, f)
    f2 = opt.get("f2pos", 26)
    atg(2*f2, lambda: e.wait_vm("X2"))
    for i, f in enumerate(f_reads(2)): atg(2*(f2+1+i) + 1, f)
    f3 = opt.get("f3pos", 60)
    atg(2*f3, lambda: e.wait_vm("X3"))
    for i, f in enumerate(f_reads(3)): atg(2*(f3+1+i) + 1, f)
    def stage_gate(n):
        if n < 72 and n % 12 == 0:
            e.wait_vm(f"W{n//12}")
            a("s_barrier")
            if n == 0: stamp(3); stamp(7, 3)
            stamp(1 + n//12, 2); stamp(n//12, 7)
    for n in range(LAG):
        stage_gate(n)
        rd_half(n, 0); rd_half(n, 1)
    for m in range(72):
        n = m + LAG
        q, t = divmod(m, 6); aa, b, ks = qabk(q)
        if m == 0: e.wait_lg("F1")
        if m == 36: e.wait_lg("F2")
        e.wait_lg(f"R{m}")
        if m == 0: stamp(4)
        for tile in range(2):
            row = tile + (1 - aa)
            c = (vBias + 4*t) if q == 0 else acc[tile][t]
            mf(acc[tile][t], m, Ffrag(row, b, ks), c)
            if tile == 0: stage_gate(n)
            if n < 72: rd_half(n, tile)
            for f in ex.get(2*m + tile, []): f()
    stamp(5); stamp(7, 2); stamp(6, 7); cstamp(0)
    pkfree = [vPk + 4*i for i in range(NPK)]
    rbfree = [vRb + 4*i for i in range(NRB)]
    tcount = [0]
    def epi_ops(accq, p, tile, slot=None):
        A, B = accq
        lt = LT == 1 or (LT == 2 and tile < NDT)
        box = {}
        cv = (lambda t: None) if opt.get("nocvt") else a
        def c0():
            box["pk"] = pkfree.pop(0)
            cv(f"v_cvt_pk_bf16_f32 v{box['pk']}, v{A}, v{A+1}")
        def c1(): cv(f"v_cvt_pk_bf16_f32 v{box['pk']+1}, v{A+2}, v{A+3}"); give(A)
        def c2(): cv(f"v_cvt_pk_bf16_f32 v{box['pk']+2}, v{B}, v{B+1}")
        def c3(): cv(f"v_cvt_pk_bf16_f32 v{box['pk']+3}, v{B+2}, v{B+3}"); give(B)
        off = f" offset:{64*p}" if p else ""
        fl = (" " + stf) if stf else ""
        def wr():
            box["buf"] = (9 + tcount[0] % 2)*1024 if slot is None else slot*1024
            tcount[0] += 1
            box["id"] = f"T{tcount[0]}"
            e.lds(box["id"] + "w", f"ds_write_b128 v{vTw}, {q4(box['pk'])} offset:{box['buf']}")
            pkfree.append(box["pk"])
        def rd():
            box["rb"] = rbfree.pop(0)
            e.lds(box["id"] + "r", f"ds_read_b128 {q4(box['rb'])}, v{vTr} offset:{box['buf']}")
        def wt(): e.wait_lg(box["id"] + "r")
        def st():
            src = box["rb"] if lt else box["pk"]
            if not opt.get("nost"):
                so = (s_o01 + tile) if tile < 3 else (s_or + tile % 4)
                e.vmem("ST", f"buffer_store_dwordx4 {q4(src)}, v{vO2 if lt else vO}, s[{sO}:{sO+3}], s{so} offen{off}{fl}")
            (rbfree if lt else pkfree).append(src)
        if lt: return [c0, c1], [c2, c3], [wr, rd, wt, st]
        return [c0, c1], [c2, c3], [st]
    NDT = opt.get("ndt", 2)
    SPREAD = ints(opt.get("spread", "2,3,4,5,6,7" if NDT == 2 else "3,4,5,6,7,8,9,10,11"))
    deferred = {}
    def defer(k, fin, minpos=None):
        tl_ = SPREAD[k]
        nth = len([1 for kk in range(k) if SPREAD[kk] == tl_])
        p0 = ints(opt.get("defpos", "40,16,64"))[nth]
        if minpos is not None: p0 = max(p0, minpos)
        deferred.setdefault(tl_, []).extend([(p0, fin[1]), (p0 + 6, fin[2]), (p0 + 7, fin[3])])
    carry = []
    for tile in range(2):
        for p in range(3):
            c01, c23, fin = epi_ops((acc[tile][2*p], acc[tile][2*p+1]), p, tile, slot=3*tile+p)
            carry.append((c01 + c23, fin))
    FINOFF = ints(opt.get("finoff", "10,13,19,20"))
    def steady(i, carry_sched):
        ex = {}
        def put(n, f): ex.setdefault(n, []).append(f)
        for n, L in carry_sched.items():
            for f in L: put(n, f)
        for n, f in deferred.get(i, []): put(n, f)
        put(1, lambda: a(f"s_add_u32 s{s_or + i % 4}, s{s_or + (i-1) % 4}, {OROW2}"))
        if i == 2: put(4, lambda: e.wait_lg("F3"))
        r = i + 2
        DD = opt.get("dd", 3)
        rows = [x for x in (([5, 6] if i == 2 else [i + 4]) if DD == 4 else [i + 3]) if x <= 13]
        if not opt.get("nodma"):
            dp0 = ints(opt.get("dmapos", "2,4,26,28"))
            for ri, r_ in enumerate(rows):
                L = xrow_dma(r_)
                dp = dp0
                if i == 2: dp = ints(opt.get("dma2", "50,55,60,65")) if ri == 0 else [62, 64, 66, 68]
                put(dp[0] - 1, L[0])
                for k in range(4): put(dp[k], L[1+k])
        if r <= 13:
            if not opt.get("nodma") or r < 5: put(opt.get("xwpos", 40), lambda: e.wait_vm(f"X{r}"))
            rp = ints(opt.get("rdpos", "41,42,43,50,51,52"))
            for k, f in enumerate(f_reads(r)): put(rp[k], f)
            put(66, lambda: e.wait_lg(f"F{r}"))
        accs = []
        nxt = {}
        for t in range(6):
            d = take(); accs.append(d)
            for q in range(12):
                n = 12*t + q
                aa, b, ks = qabk(q)
                row = i + (1 - aa)
                c = (vBias + 4*t) if q == 0 else d
                if PM == 6 and i == opt.get("ptile", 2) and q == 0: stamp(t, 6)
                if PM == 6 and i == opt.get("ptile", 2) + 1 and n == 0: stamp(6, 6)
                if PM == 6 and i == opt.get("ptile", 2) + 1 and n == 36: stamp(7, 6)
                mf(d, q*6 + t, Ffrag(row, b, ks), c)
                for f in ex.get(n, []): f()
            if t % 2 == 1:
                p = t//2
                dfr = LT == 2 and i < NDT
                c01, c23, fin = epi_ops((accs[t-1], accs[t]), p, i, slot=(3*i + p) if dfr else None)
                base = 12*t + 12
                tgt = [(base + 0, c01[0]), (base + 1, c01[1]), (base + 8, c23[0]), (base + 9, c23[1])]
                if dfr:
                    tgt.append((base + 10, fin[0]))
                    assert SPREAD[3*i + p] > i + (1 if p == 2 else 0) or (p == 2 and SPREAD[3*i+p] == i + 1)
                    defer(3*i + p, fin)
                else:
                    tgt += [(base + (FINOFF[k] if len(fin) > 1 else 10), f) for k, f in enumerate(fin)]
                for n_, f in tgt:
                    if n_ < 72: put(n_, f)
                    else: nxt.setdefault(n_ - 72, []).append(f)
        return nxt
    cs = {}
    cstep = opt.get("cstep", 6)
    for k, (cv_, fin) in enumerate(carry):
        b0 = cstep*k
        for j, f in enumerate(cv_): cs.setdefault(b0 + j, []).append(f)
        cs.setdefault(b0 + 4, []).append(fin[0])
        if len(fin) == 1: continue
        defer(k, fin, b0 + 6 if SPREAD[k] == 2 else None)
    def tail(em_carry):
        a("s_nop 7")
        for n in sorted(em_carry):
            for f in em_carry[n]: f()
    def prof_dump(em):
        if not T0: return
        b = em.a
        if opt.get("dbg"):
            b("s_waitcnt vmcnt(0)")
            b(f"s_memrealtime s[{70+14}:{71+14}]")
            b("s_load_dwordx2 s[4:5], s[0:1], 32")
            b("s_waitcnt lgkmcnt(0)")
            b("s_mov_b32 s8, s4"); b("s_and_b32 s9, s5, 0xffff"); b("s_mov_b32 s10, 256"); b("s_mov_b32 s11, 0x20000")
            b("v_mov_b32 v1, 0")
            b(f"v_writelane_b32 v1, s84, 0")
            b("s_not_b32 s6, s70")
            b(f"v_writelane_b32 v1, s6, 1")
            for k, st_ in enumerate([1, 3, 4, 5, 6, 7]):
                b(f"s_sub_u32 s6, s{70+2*st_}, s70")
                b(f"v_writelane_b32 v1, s6, {2+k}")
            b(f"s_lshl_b32 s7, s2, 2"); b(f"s_add_u32 s7, s7, s{s_w}")
            b("s_cmp_eq_u32 s7, 0")
            for k, st_ in enumerate([1, 3, 4, 5, 6, 7]):
                b(f"s_sub_u32 s6, s{70+2*st_}, s70")
                b("s_cselect_b32 s6, s6, 0") if False else None
            b("s_cmp_eq_u32 s7, 0")
            b("s_cselect_b32 s90, -1, 0")
            for k, st_ in enumerate([1, 3, 4, 5, 6, 7]):
                b(f"s_sub_u32 s6, s{70+2*st_}, s70")
                b("s_and_b32 s6, s6, s90")
                b(f"v_writelane_b32 v1, s6, {8+k}")
            b("s_sub_u32 s86, s88, s86")
            b(f"v_writelane_b32 v1, s86, 14")
            b("v_lshlrev_b32 v3, 2, v0")
            b("v_cmp_gt_u32 vcc, 16, v0")
            b("s_and_saveexec_b64 s[12:13], vcc")
            b("buffer_atomic_umax v1, v3, s[8:11], 0 offen")
            b("s_waitcnt vmcnt(0)")
            return
        b("s_waitcnt vmcnt(0)")
        if PM == 1: b(f"s_memrealtime s[{70+14}:{71+14}]")
        b("s_waitcnt lgkmcnt(0)")
        b("s_load_dwordx2 s[4:5], s[0:1], 40")
        b("s_waitcnt lgkmcnt(0)")
        b("s_mov_b32 s8, s4"); b("s_and_b32 s9, s5, 0xffff"); b("s_mov_b32 s10, 0x10000000"); b("s_mov_b32 s11, 0x20000")
        b("v_mov_b32 v1, 0")
        for i in range(8): b(f"v_writelane_b32 v1, s{70+2*i}, {i}")
        b(f"v_writelane_b32 v1, s{s_R}, 14")
        b("s_sub_u32 s86, s88, s86")
        b(f"v_writelane_b32 v1, s86, 13")
        b("s_getreg_b32 s87, hwreg(HW_REG_XCC_ID)")
        b(f"v_writelane_b32 v1, s87, 12")
        b(f"s_lshl_b32 s6, s2, 2"); b(f"s_add_u32 s6, s6, s{s_w}"); b("s_lshl_b32 s6, s6, 6")
        b("v_lshlrev_b32 v3, 2, v0")
        b("v_cmp_gt_u32 vcc, 16, v0")
        b("s_and_saveexec_b64 s[12:13], vcc")
        b("buffer_store_dword v1, v3, s[8:11], s6 offen")
        b("s_waitcnt vmcnt(0)")
    nxt = cs
    saved = None
    tl = ints(opt.get("tl", "2,3,4,5,6,8,10"))
    for i in range(2, 13):
        if i == 12:
            a(f"s_cmp_eq_u32 s{s_R}, 12")
            a("s_cbranch_scc1 L_tail12")
            saved = (e.clone(), dict(nxt), list(pkfree), list(rbfree), tcount[0])
        if i in tl: stamp(1 + tl.index(i), 5)
        if i == 3: stamp(7, 7)
        nxt = steady(i, nxt)
    stamp(6); cstamp(1)
    tail(nxt)
    prof_dump(e)
    a("s_endpgm")
    em0, nx0, pk0, rb0, tc0 = saved
    L_main = e.L
    e.L = []; e.vm = em0.vm; e.lg = em0.lg; e.vm_done = em0.vm_done; e.lg_done = em0.lg_done
    pkfree[:] = pk0; rbfree[:] = rb0; tcount[0] = tc0
    e.lab("L_tail12")
    stamp(6); cstamp(1)
    tail(nx0)
    prof_dump(e)
    e.lab("L_end")
    a("s_endpgm")
    e.lab("L_codeend")
    body = "\n".join(L_main + e.L)
    hdr = f"""; ConvTranspose2d(k=4, s=2, p=1), NHWC bf16, 224x224x96 -> 448x448x96  (generated by my own script)
; @launch grid=(256,1,1) block=(256,1,1) lds={LDS}
.amdgcn_target "amdgcn-amd-amdhsa--gfx950"
.text
.globl {KNAME}
.p2align 8
.type {KNAME},@function
{KNAME}:
{body}
.section .rodata,"a"
.p2align 6
.amdhsa_kernel {KNAME}
  .amdhsa_next_free_vgpr 512
  .amdhsa_next_free_sgpr 96
  .amdhsa_accum_offset 256
  .amdhsa_group_segment_fixed_size 0
  .amdhsa_kernarg_size 48
  .amdhsa_user_sgpr_count 2
  .amdhsa_user_sgpr_kernarg_segment_ptr 1
  .amdhsa_system_sgpr_workgroup_id_x 1
.end_amdhsa_kernel
"""
    return hdr

if __name__ == "__main__":
    import mk
    out = sys.argv[1] if len(sys.argv) > 1 else "k5.s"
    opt = {}
    for x in sys.argv[2:]:
        k, v = x.split("=")
        opt[k] = int(v) if v.lstrip("-").isdigit() else v
    open(out, "w").write(gen(opt))
    print(mk.build(out))
```

```python
import sys
KNAME = "standalone__transposed_strided__vision_kernel"
XB = 9633792; WB = 294912; OB = 38535168
XROW = 224*192
OROW2 = 2*448*192
CH = 6160
XBASE = 73984
NS = 5
SLOT = 4096
LDS = XBASE + 4*NS*SLOT

class Em:
    def __init__(s):
        s.L = []; s.vm = []; s.lg = []; s.vm_done = 0; s.lg_done = 0
    def clone(s):
        e = Em(); e.vm = list(s.vm); e.lg = list(s.lg); e.vm_done = s.vm_done; e.lg_done = s.lg_done
        return e
    def a(s, t): s.L.append("    " + t)
    def lab(s, t): s.L.append(t + ":")
    def vmem(s, tag, t): s.a(t); s.vm.append(tag)
    def lds(s, tag, t): s.a(t); s.lg.append(tag)
    def wait_vm(s, tag):
        idx = max(i for i, x in enumerate(s.vm) if x == tag) + 1
        if idx <= s.vm_done: return
        n = len(s.vm) - idx
        assert n <= 63
        s.a(f"s_waitcnt vmcnt({n})"); s.vm_done = idx
    def wait_lg(s, tag):
        idx = max(i for i, x in enumerate(s.lg) if x == tag) + 1
        if idx <= s.lg_done: return
        n = len(s.lg) - idx
        assert n <= 15, (n, tag)
        s.a(f"s_waitcnt lgkmcnt({n})"); s.lg_done = idx

def ints(x): return [int(v) for v in str(x).split(",")]

def gen(opt):
    stf = opt.get("stflags", "sc1")
    T0 = opt.get("prof", False)
    PM = opt.get("pm", 1)
    LT = opt.get("lt", 2)
    e = Em(); a = e.a
    V = 0
    def alloc(n, al=1):
        nonlocal V
        V = (V + al - 1)//al*al
        r = V; V += n; return r
    v_tid = alloc(1)
    vT = alloc(5)
    vPf = alloc(1)
    vX = alloc(4)
    vWd = alloc(3)
    vB = alloc(2)
    vW = alloc(2)
    vO = alloc(1)
    vBi = alloc(1)
    vTch = alloc(1)
    vOt = alloc(1)
    vD = alloc(3)
    vE = alloc(4)
    vER = alloc(2)
    vO2 = alloc(1)
    vTw = alloc(1, 2); vTr = alloc(1)
    vF = [alloc(24, 4) for _ in range(3)]
    NQ = 14
    vAcc = alloc(4*NQ, 4)
    vBias = alloc(24, 4)
    NPK = 4
    vPk = alloc(4*NPK, 4)
    NRB = 3
    vRb = alloc(4*NRB, 4)
    vWv = alloc(32, 4)
    assert V <= 256, V
    def wfrag(f):
        return (f"a[{4*f}:{4*f+3}]" if f < 64 else f"v[{vWv+4*(f-64)}:{vWv+4*(f-64)+3}]")
    def whalf(f, h):
        if f < 64: return f"a[{4*f+2*h}:{4*f+2*h+1}]"
        r = vWv+4*(f-64)+2*h
        return f"v[{r}:{r+1}]"
    def Ffrag(row, b, ks):
        r = vF[row % 3] + 4*(b*3+ks)
        return f"v[{r}:{r+3}]"
    def q4(r): return f"v[{r}:{r+3}]"
    sX, sX2, sW, sBs, sO = 12, 16, 20, 24, 28
    s_w, s_wh, s_o, s_px, s_py, s_strip, s_band, s_m0, s_R = 32, 33, 34, 35, 36, 37, 38, 39, 40
    s_t0, s_t1, s_t2, s_t3 = 41, 42, 43, 44
    s_xrow, s_iy, s_xb, s_pb, s_wmb = 45, 46, 47, 48, 49
    s_wo = 50
    s_or = 56
    s_o01 = 92
    s_mk = 60
    s_pc = 66
    s_tch = 68
    def stamp(i, pm=1):
        if T0 and pm == PM: a(f"s_mem{'time' if pm >= 6 else 'realtime'} s[{70+2*i}:{71+2*i}]")
    def cstamp(i):
        if T0: a(f"s_memtime s[{86+2*i}:{87+2*i}]")
    def qabk(q):
        aa = 1 - q//6; b = (q % 6)//3; ks = q % 3
        return aa, b, ks
    def wconst(q):
        aa, b, ks = qabk(q)
        return (8*aa + 2*b)*18432 + ks*6144
    t1, t2, t3, t4, t5 = [vT+i for i in range(5)]
    for pm in (1, 2, 3, 5): stamp(0, pm)
    a("s_cmp_ge_u32 s2, 256")
    a("s_cbranch_scc1 L_end")
    a("s_load_dwordx4 s[4:7], s[0:1], 0")
    a("s_load_dwordx4 s[8:11], s[0:1], 16")
    PFP = opt.get("pfpos", 0)
    def pf_addr():
        a(f"s_getpc_b64 s[{s_pc}:{s_pc+1}]")
        e.lab("L_pc")
        a(f"v_lshlrev_b32 v{t1}, 6, v0")
        a(f"v_min_u32 v{t1}, L_codeend-L_pc-4, v{t1}")
        a(f"v_mov_b32 v{vTw+1}, s{s_pc+1}")
        a(f"v_add_co_u32 v{vTw}, vcc, s{s_pc}, v{t1}")
    def pf_issue():
        e.vmem("PF", f"global_load_dword v{vPf}, v[{vTw}:{vTw+1}], off")
    assert vTw % 2 == 0 and vTr == vTw + 1
    pf_addr()
    a(f"v_lshrrev_b32 v{t4}, 6, v0")
    a(f"v_and_b32 v0, 63, v0")
    a(f"v_addc_co_u32 v{vTw+1}, vcc, 0, v{vTw+1}, vcc")
    a(f"v_readfirstlane_b32 s{s_w}, v{t4}")
    if PFP == 0: pf_issue()
    a(f"s_and_b32 s{s_t0}, s2, 7")
    a(f"s_lshr_b32 s{s_t1}, s2, 5")
    if opt.get("remap", 1):
        a(f"s_mul_i32 s{s_t2}, s{s_t0}, 7")
        a(f"s_add_u32 s{s_t2}, s{s_t2}, s{s_t1}")
        a(f"s_add_u32 s{s_t3}, s{s_t0}, 60")
        a(f"s_cmp_eq_u32 s{s_t1}, 7")
        a(f"s_cselect_b32 s{s_t2}, s{s_t3}, s{s_t2}")
        a(f"s_lshl3_add_u32 s{s_t3}, s{s_t0}, s{s_t1}")
        a(f"s_sub_u32 s{s_t3}, s{s_t3}, 4")
        a(f"s_cmp_lt_u32 s{s_t0}, 4")
        a(f"s_cselect_b32 s{s_t1}, s{s_t2}, s{s_t3}")
    else:
        a(f"s_lshl3_add_u32 s{s_t1}, s{s_t1}, s{s_t0}")
    a(f"s_cmp_ge_u32 s{s_t1}, 63")
    a("s_cbranch_scc1 L_end")
    a(f"s_bfe_u32 s{s_px}, s2, 0x10003")
    a(f"s_bfe_u32 s{s_py}, s2, 0x10004")
    a(f"s_lshl2_add_u32 s{s_t1}, s{s_t1}, s{s_w}")
    a(f"s_mul_i32 s{s_band}, s{s_t1}, 4682")
    a(f"s_lshr_b32 s{s_band}, s{s_band}, 16")
    a(f"s_mul_i32 s{s_t0}, s{s_band}, 14")
    a(f"s_sub_u32 s{s_strip}, s{s_t1}, s{s_t0}")
    a(f"s_min_u32 s{s_t0}, s{s_band}, 8")
    a(f"s_mul_i32 s{s_m0}, s{s_band}, 12")
    a(f"s_add_u32 s{s_m0}, s{s_m0}, s{s_t0}")
    a(f"s_add_u32 s{s_iy}, s{s_m0}, s{s_py}")
    a(f"s_sub_u32 s{s_iy}, s{s_iy}, 1")
    a(f"s_mul_i32 s{s_xrow}, s{s_iy}, {XROW}")
    a(f"s_lshl4_add_u32 s{s_t0}, s{s_strip}, s{s_px}")
    a(f"s_sub_u32 s{s_t1}, s{s_t0}, 1")
    a(f"s_mulk_i32 s{s_t1}, 192")
    a(f"s_cmp_eq_u32 s{s_t0}, 0")
    a(f"s_cselect_b32 s{s_t2}, 12, 0")
    a(f"s_cmpk_gt_u32 s{s_t0}, 208")
    a(f"s_cselect_b32 s{s_t3}, 0, 12")
    a(f"s_mov_b32 s{s_mk}, 0")
    a(f"s_mov_b32 s{s_mk+1}, 0xffff0000")
    a(f"s_mov_b32 s{s_mk+2}, -1")
    a(f"s_mov_b32 s{s_mk+3}, 0")
    a(f"s_mov_b32 s{s_mk+4}, 0xffff0000")
    a(f"s_mov_b32 s{s_mk+5}, -1")
    a(f"v_lshlrev_b32 v{vWd}, 4, v0")
    a(f"v_xor_b32 v{t1}, 32, v{vWd}")
    a(f"v_add_u32 v{t1}, s{s_t1}, v{t1}")
    a(f"v_add_u32 v{vX+3}, s{s_t1}, v{vWd}")
    a(f"v_bfrev_b32 v{t3}, 1")
    a(f"v_cmp_gt_u32 vcc, s{s_t2}, v0")
    a(f"v_cndmask_b32 v{vX}, v{vX+3}, v{t1}, s[{s_mk}:{s_mk+1}]")
    a(f"v_cndmask_b32 v{vX+1}, v{vX+3}, v{t1}, s[{s_mk+2}:{s_mk+3}]")
    a(f"v_cndmask_b32 v{vX}, v{vX}, v{t3}, vcc")
    a(f"v_cmp_le_u32 vcc, s{s_t3}, v0")
    a(f"v_cndmask_b32 v{vX+2}, v{vX+3}, v{t1}, s[{s_mk+4}:{s_mk+5}]")
    a(f"v_lshrrev_b32 v{t2}, 5, v0")
    a(f"v_cndmask_b32 v{vX+3}, v{vX+3}, v{t3}, vcc")
    a(f"v_mul_u32_u24 v{t2}, 1536, v{t2}")
    a(f"v_add_u32 v{vWd+1}, v{vWd}, v{t2}")
    a(f"v_add_u32 v{vWd+2}, 1536, v{vWd}")
    a(f"s_lshr_b32 s{s_wh}, s{s_w}, 1")
    a(f"s_and_b32 s{s_o}, s{s_w}, 1")
    a(f"s_lshl2_add_u32 s{s_t0}, s{s_py}, s{s_px}")
    a(f"s_sub_u32 s{s_t0}, 5, s{s_t0}")
    a(f"s_mul_i32 s{s_pb}, s{s_t0}, 18432")
    a(f"s_mul_i32 s{s_t0}, s{s_o}, 1536")
    a(f"s_add_u32 s{s_pb}, s{s_pb}, s{s_t0}")
    a(f"s_mul_i32 s{s_t2}, s{s_o}, 3080")
    a(f"s_mul_i32 s{s_t3}, s{s_wh}, {CH}")
    a(f"s_add_u32 s{s_wmb}, s{s_t2}, s{s_t3}")
    a(f"s_mul_i32 s{s_xb}, s{s_w}, {NS*SLOT}")
    a(f"s_add_u32 s{s_xb}, s{s_xb}, {XBASE}")
    def wo_calc(j):
        c0, c1 = wconst(2*j), wconst(2*j+1)
        a(f"s_cmp_eq_u32 s{s_wh}, 0")
        a(f"s_mov_b32 s{s_t0}, {c1}")
        a(f"s_cselect_b32 s{s_t0}, {c0}, s{s_t0}")
        a(f"s_add_u32 s{s_wo+j}, s{s_t0}, s{s_pb}")
    wo_calc(0)
    for s_, size in ((sX, XB), (sW, WB), (sBs, 192)):
        a(f"s_mov_b32 s{s_+2}, {size}")
        a(f"s_mov_b32 s{s_+3}, 0x20000")
    a(f"s_mov_b32 s{sX2+3}, 0x20000")
    if "D0" in str(opt.get("pre", "")) + str(opt.get("inp", "")):
        a(f"s_lshr_b32 s{s_t0}, s2, 3")
        a(f"s_lshl2_add_u32 s{s_t0}, s{s_t0}, s{s_w}")
        a(f"s_mul_i32 s{s_t0}, s{s_t0}, {18*128}")
        a(f"v_lshlrev_b32 v{t4}, 7, v0")
        a(f"v_add_u32 v{vD}, s{s_t0}, v{t4}")
    EROWS = [tuple(int(v) for v in x.split(":")) for x in str(opt.get("erows", "-1:3,2:3,5:9")).split(",")]
    s_e0, s_e1 = 96, 97
    def e_common():
        a(f"v_mul_u32_u24 v{vER}, 9363, v0")
        a(f"s_lshl1_add_u32 s{s_t0}, s{s_py}, s{s_px}")
        a(f"v_lshrrev_b32 v{vER}, 16, v{vER}")
        a(f"s_mul_i32 s{s_t0}, s{s_t0}, 7")
        a(f"v_mul_u32_u24 v{t5}, 7, v{vER}")
        a(f"s_mul_i32 s{s_t1}, s{s_strip}, 24")
        a(f"v_sub_u32 v{t5}, v0, v{t5}")
        a(f"s_add_u32 s{s_t0}, s{s_t0}, s{s_t1}")
        a(f"s_sub_u32 s{s_t0}, s{s_t0}, 2")
        a(f"v_add_u32 v{t5}, s{s_t0}, v{t5}")
        a(f"v_max_i32 v{t5}, 0, v{t5}")
        a(f"v_lshlrev_b32 v{vER+1}, 7, v{t5}")
        a(f"s_movk_i32 s{s_e0}, 223")
        a(f"s_mov_b32 s{s_e1}, {XROW}")
    def e_addr(k):
        r0 = EROWS[k][0]
        a(f"s_add_i32 s{s_t1}, s{s_m0}, {r0}")
        a(f"v_add_u32 v{t5}, s{s_t1}, v{vER}")
        a(f"v_med3_i32 v{t5}, v{t5}, 0, s{s_e0}")
        a(f"v_mad_u32_u24 v{vE+k}, v{t5}, s{s_e1}, v{vER+1}")
    used = str(opt.get("pre", "")) + "," + str(opt.get("inp", ""))
    preA_s = str(opt.get("pre", "")).split("|")[0]
    if "E" in used: e_common()
    for k in range(len(EROWS)):
        if f"E{k}" in preA_s: e_addr(k)
    a(f"v_lshrrev_b32 v{t2}, 4, v0")
    a(f"v_lshlrev_b32 v{vBi}, 4, v{t2}")
    a("s_waitcnt lgkmcnt(0)")
    stamp(1); stamp(1, 3)
    for s_, p in ((sW, 6), (sX2, 4), (sBs, 8), (sX, 4)):
        a(f"s_mov_b32 s{s_}, s{p}")
        a(f"s_and_b32 s{s_+1}, s{p+1}, 0xffff")

    def xrow_dma(r):
        L = []
        chk = r in (0, 12, 13)
        srd = sX2 if chk else sX
        def pre():
            if chk:
                a(f"s_cmp_lt_u32 s{s_iy}, 224")
                a(f"s_cselect_b32 s{sX2+2}, {XB}, 0")
            a(f"s_add_u32 m0, s{s_xb}, {(r % NS)*SLOT}")
        L.append(pre)
        for k in range(4):
            def ld(k=k):
                off = f" offset:{1024*k}" if k else ""
                if k == 3: a("s_mov_b64 exec, 0xfff")
                e.vmem(f"X{r}", f"buffer_load_dwordx4 v{vX+k}, s[{srd}:{srd+3}], s{s_xrow} offen{off} lds")
                if k == 3:
                    a("s_mov_b64 exec, -1")
                    a(f"s_add_u32 s{s_xrow}, s{s_xrow}, {XROW}")
                    a(f"s_add_u32 s{s_iy}, s{s_iy}, 1")
            L.append(ld)
        return L
    def w_dma(j):
        L = []
        def pre():
            if j > 0: wo_calc(j)
            a(f"s_add_u32 m0, s{s_wmb}, {2*j*CH}")
        L.append(pre)
        for k in range(3):
            def ld(k=k):
                off = f" offset:{1024*k}" if k else ""
                e.vmem(f"W{j}", f"buffer_load_dwordx4 v{vWd+k}, s[{sW}:{sW+3}], s{s_wo+j} offen{off} lds")
            L.append(ld)
        return L
    vbt = vAcc
    def bi_loads():
        L = [lambda: None]
        for p in range(3):
            L.append(lambda p=p: e.vmem("BI", f"buffer_load_dwordx4 {q4(vbt+4*p)}, v{vBi}, s[{sBs}:{sBs+3}], 0 offen offset:{64*p}"))
        return L
    def touch_setup():
        a(f"s_lshl_b32 s{s_t0}, s{s_strip}, 4")
        a(f"s_sub_i32 s{s_t0}, s{s_t0}, 1")
        a(f"s_max_i32 s{s_t0}, s{s_t0}, 0")
        a(f"s_mulk_i32 s{s_t0}, 192")
        a(f"v_lshlrev_b32 v{vTch}, {7 if opt.get('t128') else 6}, v0")
        a(f"v_add_u32 v{vTch}, s{s_t0}, v{vTch}")
        a(f"s_lshl1_add_u32 s{s_t0}, s{s_py}, s{s_px}")
        a(f"s_add_u32 s{s_t0}, s{s_t0}, s{s_m0}")
        a(f"s_add_u32 s{s_tch}, s{s_t0}, 4")
    def touch(i):
        def f():
            a(f"s_min_u32 s{s_tch+1}, s{s_tch}, 223")
            a(f"s_mul_i32 s{s_tch+1}, s{s_tch+1}, {XROW}")
            if opt.get('t128'): a("s_mov_b64 exec, 0xfffffff")
            elif opt.get('t54'): a("s_mov_b64 exec, s[90:91]")
            e.vmem("TC", f"buffer_load_dword v{vPf}, v{vTch}, s[{sX}:{sX+3}], s{s_tch+1} offen")
            if opt.get('t128') or opt.get('t54'): a("s_mov_b64 exec, -1")
            a(f"s_add_u32 s{s_tch}, s{s_tch}, 4")
        return [lambda: None, f]
    def grp(name):
        k, n = name[0], name[1:]
        if k == "X": return xrow_dma(int(n))
        if k == "W": return w_dma(int(n))
        if k == "T": return touch(int(n))
        if k == "B": return bi_loads()
        if k == "D":
            n_ = int(n)
            def dt():
                nl = (18, 28, 63)[n_]
                a(f"s_mov_b32 exec_lo, {hex((1 << min(nl, 32)) - 1)}")
                a(f"s_mov_b32 exec_hi, {hex((1 << max(nl - 32, 0)) - 1)}")
                srd = sW if n_ == 0 else sX
                e.vmem("TD", f"buffer_load_dword v{vPf}, v{vD+n_}, s[{srd}:{srd+3}], 0 offen")
                a("s_mov_b64 exec, -1")
            return [lambda: None, dt]
        if k == "E":
            n_ = int(n)
            def et():
                nl = 7*EROWS[n_][1]
                a(f"s_mov_b32 exec_lo, {hex((1 << min(nl, 32)) - 1)}")
                a(f"s_mov_b32 exec_hi, {hex((1 << max(nl - 32, 0)) - 1)}")
                e.vmem("TE", f"buffer_load_dword v{vPf}, v{vE+n_}, s[{sX}:{sX+3}], 0 offen")
                a("s_mov_b64 exec, -1")
            return [lambda: None, et]
        if k == "P": return [lambda: None, pf_issue]
        if k == "O":
            def ot():
                a("s_mov_b64 exec, 0x1fff")
                e.vmem("OT", f"buffer_load_dword v{vPf}, v{vOt}, s[{sO}:{sO+3}], s{s_or} offen")
                a("s_mov_b64 exec, -1")
            return [lambda: None, ot]
        raise ValueError(name)
    def run(L):
        for i, f in enumerate(L):
            f()
            if i == 0: a("s_nop 0")
    def f_reads(r):
        L = []
        for b in range(2):
            for ks in range(3):
                def rd(b=b, ks=ks):
                    e.lds(f"F{r}", f"ds_read_b128 {Ffrag(r, b, ks)}, v{vB+b} offset:{(r % NS)*SLOT + 64*ks}")
                L.append(rd)
        return L
    pre = str(opt.get("pre", "W0,X0,X1,B,W1|W2,X2,W3")).split("|")
    preA = pre[0].split(","); preB = pre[1].split(",") if len(pre) > 1 and pre[1] else []
    for g_ in preA: run(grp(g_))
    stamp(2, 3)
    for s_, size, p in ((sO, OB, 10),):
        a(f"s_mov_b32 s{s_}, s{p}")
        a(f"s_and_b32 s{s_+1}, s{p+1}, 0xffff")
        a(f"s_mov_b32 s{s_+2}, {size}")
        a(f"s_mov_b32 s{s_+3}, 0x20000")
    a(f"v_lshrrev_b32 v{t2}, 4, v0")
    a(f"v_and_b32 v{t3}, 15, v0")
    for b in range(2):
        a(f"v_add_u32 v{t4}, {1-b}, v{t3}")
        a(f"v_mul_u32_u24 v{t5}, 192, v{t4}")
        a(f"v_add_u32 v{t5}, v{t5}, v{vBi}")
        a(f"v_lshlrev_b32 v{t4}, 3, v{t4}")
        a(f"v_and_b32 v{t4}, 32, v{t4}")
        a(f"v_xor_b32 v{t5}, v{t5}, v{t4}")
        a(f"v_add_u32 v{vB+b}, s{s_xb}, v{t5}")
    a(f"v_and_b32 v{t4}, 1, v{t2}")
    a(f"v_mul_u32_u24 v{t4}, 3080, v{t4}")
    a(f"v_lshrrev_b32 v{t5}, 1, v{t2}")
    a(f"v_mul_u32_u24 v{t5}, 1536, v{t5}")
    a(f"v_add_u32 v{t4}, v{t4}, v{t5}")
    a(f"v_lshrrev_b32 v{t5}, 2, v{t3}")
    a(f"v_mul_u32_u24 v{t5}, 192, v{t5}")
    a(f"v_add_u32 v{t4}, v{t4}, v{t5}")
    a(f"v_and_b32 v{t5}, 3, v{t3}")
    a(f"v_lshlrev_b32 v{t5}, 4, v{t5}")
    a(f"v_add_u32 v{vW}, v{t4}, v{t5}")
    a(f"v_add_u32 v{vW+1}, {6*CH}, v{vW}")
    stamp(3, 3)
    touch_setup()
    def dedupe_setup():
        a(f"v_mul_u32_u24 v{t4}, 9363, v0")
        a(f"v_lshrrev_b32 v{t4}, 16, v{t4}")
        a(f"v_mul_u32_u24 v{t5}, 7, v{t4}")
        a(f"v_sub_u32 v{t5}, v0, v{t5}")
        a(f"s_lshl1_add_u32 s{s_t0}, s{s_py}, s{s_px}")
        a(f"s_mul_i32 s{s_t0}, s{s_t0}, 7")
        a(f"s_mul_i32 s{s_t1}, s{s_strip}, 24")
        a(f"s_add_u32 s{s_t0}, s{s_t0}, s{s_t1}")
        a(f"s_sub_u32 s{s_t0}, s{s_t0}, 2")
        a(f"v_add_u32 v{t5}, s{s_t0}, v{t5}")
        a(f"v_max_i32 v{t5}, 0, v{t5}")
        a(f"v_lshlrev_b32 v{t5}, 7, v{t5}")
        for kk, r0 in ((1, 1), (2, 5)):
            a(f"s_add_u32 s{s_t1}, s{s_m0}, {r0}")
            a(f"v_add_u32 v{t1}, s{s_t1}, v{t4}")
            a(f"v_min_u32 v{t1}, 223, v{t1}")
            a(f"s_mov_b32 s{s_t2}, {XROW}")
            a(f"v_mul_lo_u32 v{t1}, v{t1}, s{s_t2}")
            a(f"v_add_u32 v{vD+kk}, v{t1}, v{t5}")
    if "D1" in used or "D2" in used: dedupe_setup()
    for k in range(len(EROWS)):
        if f"E{k}" in used and f"E{k}" not in preA_s: e_addr(k)
    if opt.get("t54"):
        a("s_mov_b32 s90, -1"); a("s_mov_b32 s91, 0x3fffff")
    def late_setup():
        L = []
        L.append(lambda: a(f"s_lshl1_add_u32 s{s_t0}, s{s_m0}, s{s_py}"))
        L.append(lambda: a(f"s_mulk_i32 s{s_t0}, 448"))
        L.append(lambda: a(f"s_lshl_b32 s{s_t1}, s{s_strip}, 5"))
        L.append(lambda: a(f"s_add_u32 s{s_t0}, s{s_t0}, s{s_t1}"))
        L.append(lambda: a(f"s_add_u32 s{s_t0}, s{s_t0}, s{s_px}"))
        L.append(lambda: a(f"s_mul_i32 s{s_or}, s{s_t0}, 192"))
        L.append(lambda: a(f"s_add_u32 s{s_or+1}, s{s_or}, {OROW2}"))
        L.append(lambda: a(f"s_mov_b32 s{s_o01}, s{s_or}"))
        L.append(lambda: a(f"s_mov_b32 s{s_o01+1}, s{s_or+1}"))
        L.append(lambda: a(f"s_add_u32 s{s_o01+2}, s{s_or+1}, {OROW2}"))
        L.append(lambda: a(f"s_add_u32 s{s_o01+3}, s{s_o01+2}, {OROW2}"))
        L.append(lambda: a(f"s_cmp_lt_u32 s{s_band}, 8"))
        L.append(lambda: a(f"s_cselect_b32 s{s_R}, 13, 12"))
        return L
    for f in late_setup(): f()
    a(f"s_mov_b32 s{s_t0}, {OROW2}")
    a(f"v_mul_lo_u32 v{vOt}, s{s_t0}, v0")
    for g_ in preB: run(grp(g_))
    stamp(4, 3)
    if LT:
        a(f"s_mul_i32 s{s_t0}, s{s_w}, {(3*opt.get('ndt', 2) + (2 if LT == 1 else 0))*1024}")
        a(f"v_lshrrev_b32 v{t4}, 1, v{t3}")
        a(f"v_and_b32 v{t4}, 3, v{t4}")
        a(f"v_xor_b32 v{t4}, v{t4}, v{t2}")
        a(f"v_lshlrev_b32 v{t4}, 4, v{t4}")
        a(f"v_lshlrev_b32 v{t5}, 6, v{t3}")
        a(f"v_add3_u32 v{vTw}, v{t4}, v{t5}, s{s_t0}")
        a(f"v_lshrrev_b32 v{t1}, 2, v0")
        a(f"v_and_b32 v{t4}, 3, v0")
        a(f"v_mul_u32_u24 v{t5}, 384, v{t1}")
        a(f"v_lshl_add_u32 v{vO2}, v{t4}, 4, v{t5}")
        a(f"v_bfe_u32 v{t5}, v{t1}, 1, 2")
        a(f"v_xor_b32 v{t4}, v{t4}, v{t5}")
        a(f"v_lshlrev_b32 v{t4}, 4, v{t4}")
        a(f"v_lshlrev_b32 v{t5}, 6, v{t1}")
        a(f"v_add3_u32 v{vTr}, v{t4}, v{t5}, s{s_t0}")
    a(f"v_mul_u32_u24 v{t4}, 384, v{t3}")
    a(f"v_add_u32 v{vO}, v{t4}, v{vBi}")
    e.wait_vm("BI")
    stamp(5, 3)
    for p in range(3):
        for h in range(2):
            for r in range(4):
                src = vbt + 4*p + (4*h+r)//2
                dst = vBias + 4*(2*p+h) + r
                if r & 1: a(f"v_and_b32 v{dst}, 0xffff0000, v{src}")
                else: a(f"v_lshlrev_b32 v{dst}, 16, v{src}")
    e.wait_vm("X0")
    for f in f_reads(0): f()
    e.wait_vm("X1")
    stamp(6, 3)
    for f in f_reads(1): f()
    free = list(range(NQ))
    def take(): return vAcc + 4*free.pop(0)
    def give(r): free.append((r - vAcc)//4)
    acc = [[take() for t in range(6)] for tile in range(2)]
    LAG = opt.get("lag", 5)
    def rd_half(f, half):
        q, t = divmod(f, 6); p, h = divmod(t, 2)
        off = (q % 6)*CH + half*768 + 64*p + 8*h
        e.lds(f"R{f}", f"ds_read_b64_tr_b16 {whalf(f, half)}, v{vW + q//6} offset:{off}")
    def mf(d, f, bfr, c):
        a(f"v_mfma_f32_16x16x32_bf16 {q4(d)}, {wfrag(f)}, {bfr}, {q4(c)}")
    ex = {}
    def atg(G, f): ex.setdefault(G, []).append(f)
    for item in str(opt.get("inp", "W4@2,W5@10,X3@18,T0@26,T1@30,T2@34,X4@40")).split(","):
        if not item: continue
        name, pos = item.split("@"); pos = int(pos)
        L = grp(name)
        atg(2*pos, L[0])
        step = opt.get("pace", 1)
        for k, f in enumerate(L[1:]): atg(2*(pos + k*step) + 1, f)
    f2 = opt.get("f2pos", 26)
    atg(2*f2, lambda: e.wait_vm("X2"))
    for i, f in enumerate(f_reads(2)): atg(2*(f2+1+i) + 1, f)
    f3 = opt.get("f3pos", 60)
    atg(2*f3, lambda: e.wait_vm("X3"))
    for i, f in enumerate(f_reads(3)): atg(2*(f3+1+i) + 1, f)
    def stage_gate(n):
        if n < 72 and n % 12 == 0:
            e.wait_vm(f"W{n//12}")
            a("s_barrier")
            if n == 0: stamp(3); stamp(7, 3)
            stamp(1 + n//12, 2); stamp(n//12, 7)
    for n in range(LAG):
        stage_gate(n)
        rd_half(n, 0); rd_half(n, 1)
    for m in range(72):
        n = m + LAG
        q, t = divmod(m, 6); aa, b, ks = qabk(q)
        if m == 0: e.wait_lg("F1")
        if m == 36: e.wait_lg("F2")
        e.wait_lg(f"R{m}")
        if m == 0: stamp(4)
        for tile in range(2):
            row = tile + (1 - aa)
            c = (vBias + 4*t) if q == 0 else acc[tile][t]
            mf(acc[tile][t], m, Ffrag(row, b, ks), c)
            if tile == 0: stage_gate(n)
            if n < 72: rd_half(n, tile)
            for f in ex.get(2*m + tile, []): f()
    stamp(5); stamp(7, 2); stamp(6, 7); cstamp(0)
    pkfree = [vPk + 4*i for i in range(NPK)]
    rbfree = [vRb + 4*i for i in range(NRB)]
    tcount = [0]
    def epi_ops(accq, p, tile, slot=None):
        A, B = accq
        lt = LT == 1 or (LT == 2 and tile < NDT)
        box = {}
        cv = (lambda t: None) if opt.get("nocvt") else a
        def c0():
            box["pk"] = pkfree.pop(0)
            cv(f"v_cvt_pk_bf16_f32 v{box['pk']}, v{A}, v{A+1}")
        def c1(): cv(f"v_cvt_pk_bf16_f32 v{box['pk']+1}, v{A+2}, v{A+3}"); give(A)
        def c2(): cv(f"v_cvt_pk_bf16_f32 v{box['pk']+2}, v{B}, v{B+1}")
        def c3(): cv(f"v_cvt_pk_bf16_f32 v{box['pk']+3}, v{B+2}, v{B+3}"); give(B)
        off = f" offset:{64*p}" if p else ""
        fl = (" " + stf) if stf else ""
        def wr():
            box["buf"] = (3*NDT + tcount[0] % 2)*1024 if slot is None else slot*1024
            tcount[0] += 1
            box["id"] = f"T{tcount[0]}"
            e.lds(box["id"] + "w", f"ds_write_b128 v{vTw}, {q4(box['pk'])} offset:{box['buf']}")
            pkfree.append(box["pk"])
        def rd():
            box["rb"] = rbfree.pop(0)
            e.lds(box["id"] + "r", f"ds_read_b128 {q4(box['rb'])}, v{vTr} offset:{box['buf']}")
        def wt(): e.wait_lg(box["id"] + "r")
        def st():
            src = box["rb"] if lt else box["pk"]
            if not opt.get("nost"):
                so = (s_o01 + tile) if tile < NDT else (s_or + tile % 4)
                e.vmem("ST", f"buffer_store_dwordx4 {q4(src)}, v{vO2 if lt else vO}, s[{sO}:{sO+3}], s{so} offen{off}{fl}")
            (rbfree if lt else pkfree).append(src)
        if lt: return [c0, c1], [c2, c3], [wr, rd, wt, st]
        return [c0, c1], [c2, c3], [st]
    NDT = opt.get("ndt", 2)
    SPREAD = ints(opt.get("spread", {2: "2,3,4,5,6,7", 3: "3,4,5,6,7,8,9,10,11", 4: "4,4,5,6,6,7,8,8,9,10,10,11"}[NDT]))
    deferred = {}
    def defer(k, fin, minpos=None):
        tl_ = SPREAD[k]
        nth = len([1 for kk in range(k) if SPREAD[kk] == tl_])
        p0 = ints(opt.get("defpos", "40,16,64"))[nth]
        if minpos is not None: p0 = max(p0, minpos)
        deferred.setdefault(tl_, []).extend([(p0, fin[1]), (p0 + 6, fin[2]), (p0 + 7, fin[3])])
    carry = []
    for tile in range(2):
        for p in range(3):
            c01, c23, fin = epi_ops((acc[tile][2*p], acc[tile][2*p+1]), p, tile, slot=3*tile+p)
            carry.append((c01 + c23, fin))
    FINOFF = ints(opt.get("finoff", "10,13,19,20"))
    def steady(i, carry_sched):
        ex = {}
        def put(n, f): ex.setdefault(n, []).append(f)
        for n, L in carry_sched.items():
            for f in L: put(n, f)
        for n, f in deferred.get(i, []): put(n, f)
        put(1, lambda: a(f"s_add_u32 s{s_or + i % 4}, s{s_or + (i-1) % 4}, {OROW2}"))
        if i == 2: put(4, lambda: e.wait_lg("F3"))
        r = i + 2
        DD = opt.get("dd", 3)
        rows = [x for x in (([5, 6] if i == 2 else [i + 4]) if DD == 4 else [i + 3]) if x <= 13]
        if not opt.get("nodma"):
            dp0 = ints(opt.get("dmapos", "2,4,26,28"))
            for ri, r_ in enumerate(rows):
                L = xrow_dma(r_)
                dp = dp0
                if i == 2: dp = ints(opt.get("dma2", "50,55,60,65")) if ri == 0 else [62, 64, 66, 68]
                put(dp[0] - 1, L[0])
                for k in range(4): put(dp[k], L[1+k])
        if r <= 13:
            if not opt.get("nodma") or r < 5: put(opt.get("xwpos", 40), lambda: e.wait_vm(f"X{r}"))
            rp = ints(opt.get("rdpos", "41,42,43,50,51,52"))
            for k, f in enumerate(f_reads(r)): put(rp[k], f)
            put(66, lambda: e.wait_lg(f"F{r}"))
        accs = []
        nxt = {}
        for t in range(6):
            d = take(); accs.append(d)
            for q in range(12):
                n = 12*t + q
                aa, b, ks = qabk(q)
                row = i + (1 - aa)
                c = (vBias + 4*t) if q == 0 else d
                if PM == 6 and i == opt.get("ptile", 2) and q == 0: stamp(t, 6)
                if PM == 6 and i == opt.get("ptile", 2) + 1 and n == 0: stamp(6, 6)
                if PM == 6 and i == opt.get("ptile", 2) + 1 and n == 36: stamp(7, 6)
                mf(d, q*6 + t, Ffrag(row, b, ks), c)
                for f in ex.get(n, []): f()
            if t % 2 == 1:
                p = t//2
                dfr = LT == 2 and i < NDT
                c01, c23, fin = epi_ops((accs[t-1], accs[t]), p, i, slot=(3*i + p) if dfr else None)
                base = 12*t + 12
                tgt = [(base + 0, c01[0]), (base + 1, c01[1]), (base + 8, c23[0]), (base + 9, c23[1])]
                if dfr:
                    tgt.append((base + 10, fin[0]))
                    assert SPREAD[3*i + p] > i + (1 if p == 2 else 0) or (p == 2 and SPREAD[3*i+p] == i + 1)
                    defer(3*i + p, fin)
                else:
                    tgt += [(base + (FINOFF[k] if len(fin) > 1 else 10), f) for k, f in enumerate(fin)]
                for n_, f in tgt:
                    if n_ < 72: put(n_, f)
                    else: nxt.setdefault(n_ - 72, []).append(f)
        return nxt
    cs = {}
    cstep = opt.get("cstep", 6)
    for k, (cv_, fin) in enumerate(carry):
        b0 = cstep*k
        for j, f in enumerate(cv_): cs.setdefault(b0 + j, []).append(f)
        cs.setdefault(b0 + 4, []).append(fin[0])
        if len(fin) == 1: continue
        defer(k, fin, b0 + 6 if SPREAD[k] == 2 else None)
    def tail(em_carry):
        a("s_nop 7")
        for n in sorted(em_carry):
            for f in em_carry[n]: f()
    def prof_dump(em):
        if not T0: return
        b = em.a
        if opt.get("dbg"):
            b("s_waitcnt vmcnt(0)")
            b(f"s_memrealtime s[{70+14}:{71+14}]")
            b("s_load_dwordx2 s[4:5], s[0:1], 32")
            b("s_waitcnt lgkmcnt(0)")
            b("s_mov_b32 s8, s4"); b("s_and_b32 s9, s5, 0xffff"); b("s_mov_b32 s10, 256"); b("s_mov_b32 s11, 0x20000")
            b("v_mov_b32 v1, 0")
            b(f"v_writelane_b32 v1, s84, 0")
            b("s_not_b32 s6, s70")
            b(f"v_writelane_b32 v1, s6, 1")
            for k, st_ in enumerate([1, 3, 4, 5, 6, 7]):
                b(f"s_sub_u32 s6, s{70+2*st_}, s70")
                b(f"v_writelane_b32 v1, s6, {2+k}")
            b(f"s_lshl_b32 s7, s2, 2"); b(f"s_add_u32 s7, s7, s{s_w}")
            b("s_cmp_eq_u32 s7, 0")
            for k, st_ in enumerate([1, 3, 4, 5, 6, 7]):
                b(f"s_sub_u32 s6, s{70+2*st_}, s70")
                b("s_cselect_b32 s6, s6, 0") if False else None
            b("s_cmp_eq_u32 s7, 0")
            b("s_cselect_b32 s90, -1, 0")
            for k, st_ in enumerate([1, 3, 4, 5, 6, 7]):
                b(f"s_sub_u32 s6, s{70+2*st_}, s70")
                b("s_and_b32 s6, s6, s90")
                b(f"v_writelane_b32 v1, s6, {8+k}")
            b("s_sub_u32 s86, s88, s86")
            b(f"v_writelane_b32 v1, s86, 14")
            b("v_lshlrev_b32 v3, 2, v0")
            b("v_cmp_gt_u32 vcc, 16, v0")
            b("s_and_saveexec_b64 s[12:13], vcc")
            b("buffer_atomic_umax v1, v3, s[8:11], 0 offen")
            b("s_waitcnt vmcnt(0)")
            return
        b("s_waitcnt vmcnt(0)")
        if PM == 1: b(f"s_memrealtime s[{70+14}:{71+14}]")
        b("s_waitcnt lgkmcnt(0)")
        b("s_load_dwordx2 s[4:5], s[0:1], 40")
        b("s_waitcnt lgkmcnt(0)")
        b("s_mov_b32 s8, s4"); b("s_and_b32 s9, s5, 0xffff"); b("s_mov_b32 s10, 0x10000000"); b("s_mov_b32 s11, 0x20000")
        b("v_mov_b32 v1, 0")
        for i in range(8): b(f"v_writelane_b32 v1, s{70+2*i}, {i}")
        b(f"v_writelane_b32 v1, s{s_R}, 14")
        b("s_sub_u32 s86, s88, s86")
        b(f"v_writelane_b32 v1, s86, 13")
        b("s_getreg_b32 s87, hwreg(HW_REG_XCC_ID)")
        b(f"v_writelane_b32 v1, s87, 12")
        b(f"s_lshl_b32 s6, s2, 2"); b(f"s_add_u32 s6, s6, s{s_w}"); b("s_lshl_b32 s6, s6, 6")
        b("v_lshlrev_b32 v3, 2, v0")
        b("v_cmp_gt_u32 vcc, 16, v0")
        b("s_and_saveexec_b64 s[12:13], vcc")
        b("buffer_store_dword v1, v3, s[8:11], s6 offen")
        b("s_waitcnt vmcnt(0)")
    nxt = cs
    saved = None
    tl = ints(opt.get("tl", "2,3,4,5,6,8,10"))
    for i in range(2, 13):
        if i == 12:
            a(f"s_cmp_eq_u32 s{s_R}, 12")
            a("s_cbranch_scc1 L_tail12")
            saved = (e.clone(), dict(nxt), list(pkfree), list(rbfree), tcount[0])
        if i in tl: stamp(1 + tl.index(i), 5)
        if i == 3: stamp(7, 7)
        nxt = steady(i, nxt)
    stamp(6); cstamp(1)
    tail(nxt)
    prof_dump(e)
    a("s_endpgm")
    em0, nx0, pk0, rb0, tc0 = saved
    L_main = e.L
    e.L = []; e.vm = em0.vm; e.lg = em0.lg; e.vm_done = em0.vm_done; e.lg_done = em0.lg_done
    pkfree[:] = pk0; rbfree[:] = rb0; tcount[0] = tc0
    e.lab("L_tail12")
    stamp(6); cstamp(1)
    tail(nx0)
    prof_dump(e)
    e.lab("L_end")
    a("s_endpgm")
    e.lab("L_codeend")
    body = "\n".join(L_main + e.L)
    hdr = f"""; ConvTranspose2d(k=4, s=2, p=1), NHWC bf16, 224x224x96 -> 448x448x96  (generated by my own script)
; @launch grid=(256,1,1) block=(256,1,1) lds={LDS}
.amdgcn_target "amdgcn-amd-amdhsa--gfx950"
.text
.globl {KNAME}
.p2align 8
.type {KNAME},@function
{KNAME}:
{body}
.section .rodata,"a"
.p2align 6
.amdhsa_kernel {KNAME}
  .amdhsa_next_free_vgpr 512
  .amdhsa_next_free_sgpr 100
  .amdhsa_accum_offset 256
  .amdhsa_group_segment_fixed_size 0
  .amdhsa_kernarg_size 48
  .amdhsa_user_sgpr_count 2
  .amdhsa_user_sgpr_kernarg_segment_ptr 1
  .amdhsa_system_sgpr_workgroup_id_x 1
.end_amdhsa_kernel
"""
    return hdr

if __name__ == "__main__":
    import mk
    out = sys.argv[1] if len(sys.argv) > 1 else "k5.s"
    opt = {}
    for x in sys.argv[2:]:
        k, v = x.split("=")
        opt[k] = int(v) if v.lstrip("-").isdigit() else v
    open(out, "w").write(gen(opt))
    print(mk.build(out))
```

```python
import sys
KNAME = "standalone__transposed_strided__vision_kernel"
XB = 9633792; WB = 294912; OB = 38535168
XROW = 224*192
OROW2 = 2*448*192
CH = 6160
XBASE = 73984
NS = 5
SLOT = 4096
LDS = XBASE + 4*NS*SLOT

class Em:
    def __init__(s):
        s.L = []; s.vm = []; s.lg = []; s.vm_done = 0; s.lg_done = 0
    def clone(s):
        e = Em(); e.vm = list(s.vm); e.lg = list(s.lg); e.vm_done = s.vm_done; e.lg_done = s.lg_done
        return e
    def a(s, t): s.L.append("    " + t)
    def c(s, t): s.L.append("    ; " + t)
    def lab(s, t): s.L.append(t + ":")
    def vmem(s, tag, t): s.a(t); s.vm.append(tag)
    def lds(s, tag, t): s.a(t); s.lg.append(tag)
    def wait_vm(s, tag):
        idx = max(i for i, x in enumerate(s.vm) if x == tag) + 1
        if idx <= s.vm_done: return
        n = len(s.vm) - idx
        assert n <= 63
        s.a(f"s_waitcnt vmcnt({n})"); s.vm_done = idx
    def wait_lg(s, tag):
        idx = max(i for i, x in enumerate(s.lg) if x == tag) + 1
        if idx <= s.lg_done: return
        n = len(s.lg) - idx
        assert n <= 15, (n, tag)
        s.a(f"s_waitcnt lgkmcnt({n})"); s.lg_done = idx

def ints(x): return [int(v) for v in str(x).split(",")]

def gen(opt):
    stf = opt.get("stflags", "sc1")
    T0 = opt.get("prof", False)
    PM = opt.get("pm", 1)
    NDT = opt.get("ndt", 3)
    e = Em(); a = e.a; cm = e.c
    V = 0
    def alloc(n, al=1):
        nonlocal V
        V = (V + al - 1)//al*al
        r = V; V += n; return r
    v_tid = alloc(1)
    vT = alloc(5)
    vPf = alloc(1)
    vX = alloc(4)
    vWd = alloc(3)
    vB = alloc(2)
    vW = alloc(2)
    vO = alloc(1)
    vBi = alloc(1)
    vO2 = alloc(1)
    vD = alloc(1)
    vE = alloc(2)
    vER = alloc(2)
    vTw = alloc(1, 2); vTr = alloc(1)
    vF = [alloc(24, 4) for _ in range(3)]
    NQ = 14
    vAcc = alloc(4*NQ, 4)
    vBias = alloc(24, 4)
    NPK = 4
    vPk = alloc(4*NPK, 4)
    NRB = 3
    vRb = alloc(4*NRB, 4)
    vWv = alloc(32, 4)
    assert V <= 256, V
    def wfrag(f):
        return (f"a[{4*f}:{4*f+3}]" if f < 64 else f"v[{vWv+4*(f-64)}:{vWv+4*(f-64)+3}]")
    def whalf(f, h):
        if f < 64: return f"a[{4*f+2*h}:{4*f+2*h+1}]"
        r = vWv+4*(f-64)+2*h
        return f"v[{r}:{r+1}]"
    def Ffrag(row, b, ks):
        r = vF[row % 3] + 4*(b*3+ks)
        return f"v[{r}:{r+3}]"
    def q4(r): return f"v[{r}:{r+3}]"
    sX, sX2, sW, sBs, sO = 12, 16, 20, 24, 28
    s_w, s_wh, s_o, s_px, s_py, s_strip, s_band, s_m0, s_R = 32, 33, 34, 35, 36, 37, 38, 39, 40
    s_t0, s_t1, s_t2, s_t3 = 41, 42, 43, 44
    s_xrow, s_iy, s_xb, s_pb, s_wmb = 45, 46, 47, 48, 49
    s_wo = 50
    s_or = 56
    s_mk = 60
    s_pc = 66
    s_o01 = 92
    s_e0, s_e1, s_iw = 96, 97, 98
    def stamp(i, pm=1):
        if T0 and pm == PM: a(f"s_mem{'time' if pm >= 6 else 'realtime'} s[{70+2*i}:{71+2*i}]")
    def cstamp(i):
        if T0: a(f"s_memtime s[{86+2*i}:{87+2*i}]")
    def qabk(q):
        aa = 1 - q//6; b = (q % 6)//3; ks = q % 3
        return aa, b, ks
    def wconst(q):
        aa, b, ks = qabk(q)
        return (8*aa + 2*b)*18432 + ks*6144
    t1, t2, t3, t4, t5 = [vT+i for i in range(5)]
    EROWS = [tuple(int(v) for v in x.split(":")) for x in str(opt.get("erows", "-1:5,5:9")).split(",")]

    cm("---- decode workgroup / wave, start the L2 prefetches as early as possible ----")
    for pm in (1, 2, 3, 5): stamp(0, pm)
    a("s_cmp_ge_u32 s2, 256")
    a("s_cbranch_scc1 L_end")
    a("s_load_dwordx4 s[4:7], s[0:1], 0")
    a("s_load_dwordx4 s[8:11], s[0:1], 16")
    a(f"v_lshrrev_b32 v{t4}, 6, v0")
    a(f"s_getpc_b64 s[{s_pc}:{s_pc+1}]")
    e.lab("L_pc")
    a(f"v_readfirstlane_b32 s{s_w}, v{t4}")
    a(f"v_and_b32 v0, 63, v0")
    assert vTw % 2 == 0 and vTr == vTw + 1
    a(f"s_lshr_b32 s{s_iw}, s2, 3")
    a(f"s_lshl2_add_u32 s{s_iw}, s{s_iw}, s{s_w}")
    cm("each wave pulls one 128-byte line of this kernel's code into L2")
    a(f"s_lshl_b32 s{s_t0}, s{s_iw}, 7")
    a(f"s_min_u32 s{s_t0}, s{s_t0}, L_codeend-L_pc-4")
    a(f"s_add_u32 s{s_t0}, s{s_t0}, s{s_pc}")
    a(f"s_addc_u32 s{s_t1}, s{s_pc+1}, 0")
    a(f"v_mov_b32 v{vTw}, s{s_t0}")
    a(f"v_mov_b32 v{vTw+1}, s{s_t1}")
    a(f"s_and_b32 s{s_t0}, s2, 7")
    a(f"s_lshr_b32 s{s_t1}, s2, 5")
    e.vmem("PF", f"global_load_dword v{vPf}, v[{vTw}:{vTw+1}], off")
    cm("unit group c: 13-row groups (c < 28) on slots 0..3: c = 7*slot + grp (grp < 7), c = 60 + slot (grp == 7);")
    cm("slots 4..7: c = 28 + 8*(slot-4) + grp.  c == 63 has no work.")
    a(f"s_mul_i32 s{s_t2}, s{s_t0}, 7")
    a(f"s_add_u32 s{s_t2}, s{s_t2}, s{s_t1}")
    a(f"s_add_u32 s{s_t3}, s{s_t0}, 60")
    a(f"s_cmp_eq_u32 s{s_t1}, 7")
    a(f"s_cselect_b32 s{s_t2}, s{s_t3}, s{s_t2}")
    a(f"s_lshl3_add_u32 s{s_t3}, s{s_t0}, s{s_t1}")
    a(f"s_sub_u32 s{s_t3}, s{s_t3}, 4")
    a(f"s_cmp_lt_u32 s{s_t0}, 4")
    a(f"s_cselect_b32 s{s_t1}, s{s_t2}, s{s_t3}")
    a(f"s_cmp_ge_u32 s{s_t1}, 63")
    a("s_cbranch_scc1 L_end")
    a(f"s_bfe_u32 s{s_px}, s2, 0x10003")
    a(f"s_bfe_u32 s{s_py}, s2, 0x10004")
    a(f"s_lshl2_add_u32 s{s_t1}, s{s_t1}, s{s_w}")
    a(f"s_mul_i32 s{s_band}, s{s_t1}, 4682")
    a(f"s_lshr_b32 s{s_band}, s{s_band}, 16")
    a(f"s_mul_i32 s{s_t0}, s{s_band}, 14")
    a(f"s_sub_u32 s{s_strip}, s{s_t1}, s{s_t0}")
    a(f"s_min_u32 s{s_t0}, s{s_band}, 8")
    a(f"s_mul_i32 s{s_m0}, s{s_band}, 12")
    a(f"s_add_u32 s{s_m0}, s{s_m0}, s{s_t0}")
    cm("x L2 prefetch: the 4 phase workgroups of a group each touch 7 of the 28 lines of a row segment")
    a(f"v_mul_u32_u24 v{vER}, 9363, v0")
    a(f"s_lshl1_add_u32 s{s_t0}, s{s_py}, s{s_px}")
    a(f"v_lshrrev_b32 v{vER}, 16, v{vER}")
    a(f"s_mul_i32 s{s_t0}, s{s_t0}, 7")
    a(f"v_mul_u32_u24 v{t5}, 7, v{vER}")
    a(f"s_mul_i32 s{s_t1}, s{s_strip}, 24")
    a(f"v_sub_u32 v{t5}, v0, v{t5}")
    a(f"s_add_u32 s{s_t0}, s{s_t0}, s{s_t1}")
    a(f"s_sub_u32 s{s_t0}, s{s_t0}, 2")
    a(f"v_add_u32 v{t5}, s{s_t0}, v{t5}")
    a(f"v_max_i32 v{t5}, 0, v{t5}")
    a(f"v_lshlrev_b32 v{vER+1}, 7, v{t5}")
    a(f"s_movk_i32 s{s_e0}, 223")
    a(f"s_mov_b32 s{s_e1}, {XROW}")
    def e_addr(k):
        a(f"s_add_i32 s{s_t1}, s{s_m0}, {EROWS[k][0]}")
        a(f"v_add_u32 v{t5}, s{s_t1}, v{vER}")
        a(f"v_med3_i32 v{t5}, v{t5}, 0, s{s_e0}")
        a(f"v_mad_u32_u24 v{vE+k}, v{t5}, s{s_e1}, v{vER+1}")
    e_addr(0)
    cm("weight L2 prefetch: 18 lines per wave")
    a(f"s_mul_i32 s{s_t0}, s{s_iw}, {18*128}")
    a(f"v_lshlrev_b32 v{t4}, 7, v0")
    a(f"v_add_u32 v{vD}, s{s_t0}, v{t4}")
    for s_, size in ((sX, XB), (sW, WB)):
        a(f"s_mov_b32 s{s_+2}, {size}")
        a(f"s_mov_b32 s{s_+3}, 0x20000")
    a("s_waitcnt lgkmcnt(0)")
    stamp(1); stamp(1, 3)
    for s_, p in ((sX, 4), (sW, 6)):
        a(f"s_mov_b32 s{s_}, s{p}")
        a(f"s_and_b32 s{s_+1}, s{p+1}, 0xffff")
    def touch(tag, nl, vaddr, srd):
        a(f"s_mov_b32 exec_lo, {hex((1 << min(nl, 32)) - 1)}")
        a(f"s_mov_b32 exec_hi, {hex((1 << max(nl - 32, 0)) - 1)}")
        e.vmem(tag, f"buffer_load_dword v{vPf}, v{vaddr}, s[{srd}:{srd+3}], 0 offen")
        a("s_mov_b64 exec, -1")
    touch("TE", 7*EROWS[0][1], vE, sX)
    touch("TD", 18, vD, sW)
    stamp(2, 3)

    cm("---- addresses of the LDS-DMA loads ----")
    for s_, p, size in ((sX2, 4, None), (sBs, 8, 192), (sO, 10, OB)):
        a(f"s_mov_b32 s{s_}, s{p}")
        a(f"s_and_b32 s{s_+1}, s{p+1}, 0xffff")
        if size: a(f"s_mov_b32 s{s_+2}, {size}")
        a(f"s_mov_b32 s{s_+3}, 0x20000")
    a(f"s_add_u32 s{s_iy}, s{s_m0}, s{s_py}")
    a(f"s_sub_u32 s{s_iy}, s{s_iy}, 1")
    a(f"s_mul_i32 s{s_xrow}, s{s_iy}, {XROW}")
    a(f"s_lshl4_add_u32 s{s_t0}, s{s_strip}, s{s_px}")
    a(f"s_sub_u32 s{s_t1}, s{s_t0}, 1")
    a(f"s_mulk_i32 s{s_t1}, 192")
    a(f"s_cmp_eq_u32 s{s_t0}, 0")
    a(f"s_cselect_b32 s{s_t2}, 12, 0")
    a(f"s_cmpk_gt_u32 s{s_t0}, 208")
    a(f"s_cselect_b32 s{s_t3}, 0, 12")
    a(f"s_mov_b32 s{s_mk}, 0")
    a(f"s_mov_b32 s{s_mk+1}, 0xffff0000")
    a(f"s_mov_b32 s{s_mk+2}, -1")
    a(f"s_mov_b32 s{s_mk+3}, 0")
    a(f"s_mov_b32 s{s_mk+4}, 0xffff0000")
    a(f"s_mov_b32 s{s_mk+5}, -1")
    a(f"v_lshlrev_b32 v{vWd}, 4, v0")
    a(f"v_xor_b32 v{t1}, 32, v{vWd}")
    a(f"v_add_u32 v{t1}, s{s_t1}, v{t1}")
    a(f"v_add_u32 v{vX+3}, s{s_t1}, v{vWd}")
    a(f"v_bfrev_b32 v{t3}, 1")
    a(f"v_cmp_gt_u32 vcc, s{s_t2}, v0")
    a(f"v_cndmask_b32 v{vX}, v{vX+3}, v{t1}, s[{s_mk}:{s_mk+1}]")
    a(f"v_cndmask_b32 v{vX+1}, v{vX+3}, v{t1}, s[{s_mk+2}:{s_mk+3}]")
    a(f"v_cndmask_b32 v{vX}, v{vX}, v{t3}, vcc")
    a(f"v_cmp_le_u32 vcc, s{s_t3}, v0")
    a(f"v_cndmask_b32 v{vX+2}, v{vX+3}, v{t1}, s[{s_mk+4}:{s_mk+5}]")
    a(f"v_lshrrev_b32 v{t2}, 5, v0")
    a(f"v_cndmask_b32 v{vX+3}, v{vX+3}, v{t3}, vcc")
    a(f"v_mul_u32_u24 v{t2}, 1536, v{t2}")
    a(f"v_add_u32 v{vWd+1}, v{vWd}, v{t2}")
    a(f"v_add_u32 v{vWd+2}, 1536, v{vWd}")
    a(f"s_lshr_b32 s{s_wh}, s{s_w}, 1")
    a(f"s_and_b32 s{s_o}, s{s_w}, 1")
    a(f"s_lshl2_add_u32 s{s_t0}, s{s_py}, s{s_px}")
    a(f"s_sub_u32 s{s_t0}, 5, s{s_t0}")
    a(f"s_mul_i32 s{s_pb}, s{s_t0}, 18432")
    a(f"s_mul_i32 s{s_t0}, s{s_o}, 1536")
    a(f"s_add_u32 s{s_pb}, s{s_pb}, s{s_t0}")
    a(f"s_mul_i32 s{s_t2}, s{s_o}, 3080")
    a(f"s_mul_i32 s{s_t3}, s{s_wh}, {CH}")
    a(f"s_add_u32 s{s_wmb}, s{s_t2}, s{s_t3}")
    a(f"s_mul_i32 s{s_xb}, s{s_w}, {NS*SLOT}")
    a(f"s_add_u32 s{s_xb}, s{s_xb}, {XBASE}")
    def wo_calc(j):
        c0, c1 = wconst(2*j), wconst(2*j+1)
        a(f"s_cmp_eq_u32 s{s_wh}, 0")
        a(f"s_mov_b32 s{s_t0}, {c1}")
        a(f"s_cselect_b32 s{s_t0}, {c0}, s{s_t0}")
        a(f"s_add_u32 s{s_wo+j}, s{s_t0}, s{s_pb}")
    a(f"v_lshrrev_b32 v{t2}, 4, v0")
    a(f"v_and_b32 v{t3}, 15, v0")
    a(f"v_lshlrev_b32 v{vBi}, 4, v{t2}")

    def xrow_dma(r):
        L = []
        chk = r in (0, 12, 13)
        srd = sX2 if chk else sX
        def pre():
            if chk:
                a(f"s_cmp_lt_u32 s{s_iy}, 224")
                a(f"s_cselect_b32 s{sX2+2}, {XB}, 0")
            a(f"s_add_u32 m0, s{s_xb}, {(r % NS)*SLOT}")
        L.append(pre)
        for k in range(4):
            def ld(k=k):
                off = f" offset:{1024*k}" if k else ""
                if k == 3: a("s_mov_b64 exec, 0xfff")
                e.vmem(f"X{r}", f"buffer_load_dwordx4 v{vX+k}, s[{srd}:{srd+3}], s{s_xrow} offen{off} lds")
                if k == 3:
                    a("s_mov_b64 exec, -1")
                    a(f"s_add_u32 s{s_xrow}, s{s_xrow}, {XROW}")
                    if r in (0, 11, 12) or True: a(f"s_add_u32 s{s_iy}, s{s_iy}, 1")
            L.append(ld)
        return L
    def w_dma(j):
        L = []
        def pre():
            wo_calc(j)
            a(f"s_add_u32 m0, s{s_wmb}, {2*j*CH}")
        L.append(pre)
        for k in range(3):
            def ld(k=k):
                off = f" offset:{1024*k}" if k else ""
                e.vmem(f"W{j}", f"buffer_load_dwordx4 v{vWd+k}, s[{sW}:{sW+3}], s{s_wo+j} offen{off} lds")
            L.append(ld)
        return L
    vbt = vAcc
    def bi_loads():
        L = [lambda: None]
        for p in range(3):
            L.append(lambda p=p: e.vmem("BI", f"buffer_load_dwordx4 {q4(vbt+4*p)}, v{vBi}, s[{sBs}:{sBs+3}], 0 offen offset:{64*p}"))
        return L
    def grp(name):
        k, n = name[0], name[1:]
        if k == "X": return xrow_dma(int(n))
        if k == "W": return w_dma(int(n))
        if k == "B": return bi_loads()
        if k == "E": return [lambda: None, lambda: touch("TE", 7*EROWS[int(n)][1], vE + int(n), sX)]
        raise ValueError(name)
    def run(L):
        for i, f in enumerate(L):
            f()
            if i == 0: a("s_nop 0")
    def f_reads(r):
        L = []
        for b in range(2):
            for ks in range(3):
                def rd(b=b, ks=ks):
                    e.lds(f"F{r}", f"ds_read_b128 {Ffrag(r, b, ks)}, v{vB+b} offset:{(r % NS)*SLOT + 64*ks}")
                L.append(rd)
        return L
    def part_B():
        cm("---- LDS read addresses, store addresses ----")
        for b in range(2):
            a(f"v_add_u32 v{t4}, {1-b}, v{t3}")
            a(f"v_mul_u32_u24 v{t5}, 192, v{t4}")
            a(f"v_add_u32 v{t5}, v{t5}, v{vBi}")
            a(f"v_lshlrev_b32 v{t4}, 3, v{t4}")
            a(f"v_and_b32 v{t4}, 32, v{t4}")
            a(f"v_xor_b32 v{t5}, v{t5}, v{t4}")
            a(f"v_add_u32 v{vB+b}, s{s_xb}, v{t5}")
        a(f"v_and_b32 v{t4}, 1, v{t2}")
        a(f"v_mul_u32_u24 v{t4}, 3080, v{t4}")
        a(f"v_lshrrev_b32 v{t5}, 1, v{t2}")
        a(f"v_mul_u32_u24 v{t5}, 1536, v{t5}")
        a(f"v_add_u32 v{t4}, v{t4}, v{t5}")
        a(f"v_lshrrev_b32 v{t5}, 2, v{t3}")
        a(f"v_mul_u32_u24 v{t5}, 192, v{t5}")
        a(f"v_add_u32 v{t4}, v{t4}, v{t5}")
        a(f"v_and_b32 v{t5}, 3, v{t3}")
        a(f"v_lshlrev_b32 v{t5}, 4, v{t5}")
        a(f"v_add_u32 v{vW}, v{t4}, v{t5}")
        a(f"v_add_u32 v{vW+1}, {6*CH}, v{vW}")
        e_addr(1)
        a(f"s_lshl1_add_u32 s{s_t0}, s{s_m0}, s{s_py}")
        a(f"s_mulk_i32 s{s_t0}, 448")
        a(f"s_lshl_b32 s{s_t1}, s{s_strip}, 5")
        a(f"s_add_u32 s{s_t0}, s{s_t0}, s{s_t1}")
        a(f"s_add_u32 s{s_t0}, s{s_t0}, s{s_px}")
        a(f"s_mul_i32 s{s_o01}, s{s_t0}, 192")
        for k in range(1, NDT): a(f"s_add_u32 s{s_o01+k}, s{s_o01+k-1}, {OROW2}")
        a(f"s_add_u32 s{s_or+1}, s{s_o01}, {OROW2}")
        a(f"s_cmp_lt_u32 s{s_band}, 8")
        a(f"s_cselect_b32 s{s_R}, 13, 12")
        a(f"s_mul_i32 s{s_t0}, s{s_w}, {3*NDT*1024}")
        a(f"v_lshrrev_b32 v{t4}, 1, v{t3}")
        a(f"v_and_b32 v{t4}, 3, v{t4}")
        a(f"v_xor_b32 v{t4}, v{t4}, v{t2}")
        a(f"v_lshlrev_b32 v{t4}, 4, v{t4}")
        a(f"v_lshlrev_b32 v{t5}, 6, v{t3}")
        a(f"v_add3_u32 v{vTw}, v{t4}, v{t5}, s{s_t0}")
        a(f"v_lshrrev_b32 v{t1}, 2, v0")
        a(f"v_and_b32 v{t4}, 3, v0")
        a(f"v_mul_u32_u24 v{t5}, 384, v{t1}")
        a(f"v_lshl_add_u32 v{vO2}, v{t4}, 4, v{t5}")
        a(f"v_bfe_u32 v{t5}, v{t1}, 1, 2")
        a(f"v_xor_b32 v{t4}, v{t4}, v{t5}")
        a(f"v_lshlrev_b32 v{t4}, 4, v{t4}")
        a(f"v_lshlrev_b32 v{t5}, 6, v{t1}")
        a(f"v_add3_u32 v{vTr}, v{t4}, v{t5}, s{s_t0}")
        a(f"v_mul_u32_u24 v{t4}, 384, v{t3}")
        a(f"v_add_u32 v{vO}, v{t4}, v{vBi}")
    pre = str(opt.get("pre", "B,X0,X1,W0|W1,W2,X2")).split("|")
    preA = pre[0].split(","); preB = pre[1].split(",") if len(pre) > 1 and pre[1] else []
    BF = opt.get("bfirst", 1)
    if BF: part_B()
    cm("---- first loads ----")
    for g_ in preA: run(grp(g_))
    stamp(3, 3)
    if not BF: part_B()
    for g_ in preB: run(grp(g_))
    stamp(4, 3)
    e.wait_vm("BI")
    stamp(5, 3)
    cm("bias -> fp32 accumulator initial values")
    for p in range(3):
        for h in range(2):
            for r in range(4):
                src = vbt + 4*p + (4*h+r)//2
                dst = vBias + 4*(2*p+h) + r
                if r & 1: a(f"v_and_b32 v{dst}, 0xffff0000, v{src}")
                else: a(f"v_lshlrev_b32 v{dst}, 16, v{src}")
    e.wait_vm("X0")
    for f in f_reads(0): f()
    e.wait_vm("X1")
    stamp(6, 3)
    for f in f_reads(1): f()

    cm("---- first pass: output rows 0 and 1, weights stream LDS -> registers ----")
    free = list(range(NQ))
    def take(): return vAcc + 4*free.pop(0)
    def give(r): free.append((r - vAcc)//4)
    acc = [[take() for t in range(6)] for tile in range(2)]
    LAG = opt.get("lag", 5)
    def rd_half(f, half):
        q, t = divmod(f, 6); p, h = divmod(t, 2)
        off = (q % 6)*CH + half*768 + 64*p + 8*h
        e.lds(f"R{f}", f"ds_read_b64_tr_b16 {whalf(f, half)}, v{vW + q//6} offset:{off}")
    def mf(d, f, bfr, c):
        a(f"v_mfma_f32_16x16x32_bf16 {q4(d)}, {wfrag(f)}, {bfr}, {q4(c)}")
    ex = {}
    def atg(G, f): ex.setdefault(G, []).append(f)
    for item in str(opt.get("inp", "W3@0,W4@3,W5@6,X3@9,X4@13,E1@17")).split(","):
        if not item: continue
        name, pos = item.split("@"); pos = int(pos)
        L = grp(name)
        atg(2*pos, L[0])
        step = opt.get("pace", 1)
        for k, f in enumerate(L[1:]): atg(2*(pos + k*step) + 1, f)
    f2 = opt.get("f2pos", 29)
    atg(2*f2, lambda: e.wait_vm("X2"))
    for i, f in enumerate(f_reads(2)): atg(2*(f2+1+i) + 1, f)
    f3 = opt.get("f3pos", 60)
    atg(2*f3, lambda: e.wait_vm("X3"))
    for i, f in enumerate(f_reads(3)): atg(2*(f3+1+i) + 1, f)
    def stage_gate(n):
        if n < 72 and n % 12 == 0:
            e.wait_vm(f"W{n//12}")
            a("s_barrier")
            if n == 0: stamp(3); stamp(7, 3)
            stamp(1 + n//12, 2); stamp(n//12, 7)
    for n in range(LAG):
        stage_gate(n)
        rd_half(n, 0); rd_half(n, 1)
    for m in range(72):
        n = m + LAG
        q, t = divmod(m, 6); aa, b, ks = qabk(q)
        if m == 0: e.wait_lg("F1")
        if m == 36: e.wait_lg("F2")
        e.wait_lg(f"R{m}")
        if m == 0: stamp(4)
        for tile in range(2):
            row = tile + (1 - aa)
            c = (vBias + 4*t) if q == 0 else acc[tile][t]
            mf(acc[tile][t], m, Ffrag(row, b, ks), c)
            if tile == 0: stage_gate(n)
            if n < 72: rd_half(n, tile)
            for f in ex.get(2*m + tile, []): f()
    assert 3*NDT*4096 <= 55000
    stamp(5); stamp(7, 2); stamp(6, 7); cstamp(0)

    pkfree = [vPk + 4*i for i in range(NPK)]
    rbfree = [vRb + 4*i for i in range(NRB)]
    def epi_ops(accq, p, tile):
        A, B = accq
        lt = tile < NDT
        box = {}
        cv = (lambda t: None) if opt.get("nocvt") else a
        def c0():
            box["pk"] = pkfree.pop(0)
            cv(f"v_cvt_pk_bf16_f32 v{box['pk']}, v{A}, v{A+1}")
        def c1(): cv(f"v_cvt_pk_bf16_f32 v{box['pk']+1}, v{A+2}, v{A+3}"); give(A)
        def c2(): cv(f"v_cvt_pk_bf16_f32 v{box['pk']+2}, v{B}, v{B+1}")
        def c3(): cv(f"v_cvt_pk_bf16_f32 v{box['pk']+3}, v{B+2}, v{B+3}"); give(B)
        off = f" offset:{64*p}" if p else ""
        fl = (" " + stf) if stf else ""
        slot = 3*tile + p
        def wr():
            e.lds(f"T{slot}w", f"ds_write_b128 v{vTw}, {q4(box['pk'])} offset:{slot*1024}")
            pkfree.append(box["pk"])
        def rd():
            box["rb"] = rbfree.pop(0)
            e.lds(f"T{slot}r", f"ds_read_b128 {q4(box['rb'])}, v{vTr} offset:{slot*1024}")
        def wt(): e.wait_lg(f"T{slot}r")
        def st():
            src = box["rb"] if lt else box["pk"]
            so = (s_o01 + tile) if tile < NDT else (s_or + tile % 4)
            if not opt.get("nost"):
                e.vmem("ST", f"buffer_store_dwordx4 {q4(src)}, v{vO2 if lt else vO}, s[{sO}:{sO+3}], s{so} offen{off}{fl}")
            (rbfree if lt else pkfree).append(src)
        if lt: return [c0, c1], [c2, c3], [wr, rd, wt, st]
        return [c0, c1], [c2, c3], [st]
    SPREAD = ints(opt.get("spread", {2: "2,3,4,5,6,7", 3: "3,4,5,6,7,8,9,10,11", 4: "4,4,5,6,6,7,8,8,9,10,10,11"}[NDT]))
    deferred = {}
    def defer(k, fin, minpos=None):
        tl_ = SPREAD[k]
        nth = len([1 for kk in range(k) if SPREAD[kk] == tl_])
        p0 = ints(opt.get("defpos", "40,16,64"))[nth]
        if minpos is not None: p0 = max(p0, minpos)
        deferred.setdefault(tl_, []).extend([(p0, fin[1]), (p0 + 6, fin[2]), (p0 + 7, fin[3])])
    carry = []
    for tile in range(2):
        for p in range(3):
            c01, c23, fin = epi_ops((acc[tile][2*p], acc[tile][2*p+1]), p, tile)
            carry.append((c01 + c23, fin))
    def steady(i, carry_sched):
        cm(f"---- output row {i} ----")
        ex = {}
        def put(n, f): ex.setdefault(n, []).append(f)
        for n, L in carry_sched.items():
            for f in L: put(n, f)
        for n, f in deferred.get(i, []): put(n, f)
        put(1, lambda: a(f"s_add_u32 s{s_or + i % 4}, s{s_or + (i-1) % 4}, {OROW2}"))
        if i == 2: put(4, lambda: e.wait_lg("F3"))
        r = i + 2
        if i + 3 <= 13:
            L = xrow_dma(i + 3)
            dp = ints(opt.get("dma2", "50,55,60,65")) if i == 2 else ints(opt.get("dmapos", "2,4,26,28"))
            put(dp[0] - 1, L[0])
            for k in range(4): put(dp[k], L[1+k])
        if r <= 13:
            put(opt.get("xwpos", 40), lambda: e.wait_vm(f"X{r}"))
            rp = ints(opt.get("rdpos", "41,42,43,50,51,52"))
            for k, f in enumerate(f_reads(r)): put(rp[k], f)
            put(66, lambda: e.wait_lg(f"F{r}"))
        accs = []
        nxt = {}
        for t in range(6):
            d = take(); accs.append(d)
            for q in range(12):
                n = 12*t + q
                aa, b, ks = qabk(q)
                row = i + (1 - aa)
                c = (vBias + 4*t) if q == 0 else d
                if PM == 6 and i == opt.get("ptile", 2) and q == 0: stamp(t, 6)
                if PM == 6 and i == opt.get("ptile", 2) + 1 and n == 0: stamp(6, 6)
                if PM == 6 and i == opt.get("ptile", 2) + 1 and n == 36: stamp(7, 6)
                mf(d, q*6 + t, Ffrag(row, b, ks), c)
                for f in ex.get(n, []): f()
            if t % 2 == 1:
                p = t//2
                c01, c23, fin = epi_ops((accs[t-1], accs[t]), p, i)
                base = 12*t + 12
                tgt = [(base + 0, c01[0]), (base + 1, c01[1]), (base + 8, c23[0]), (base + 9, c23[1]), (base + 10, fin[0])]
                if i < NDT:
                    assert SPREAD[3*i + p] > i
                    defer(3*i + p, fin)
                for n_, f in tgt:
                    if n_ < 72: put(n_, f)
                    else: nxt.setdefault(n_ - 72, []).append(f)
        return nxt
    cs = {}
    cstep = opt.get("cstep", 6)
    for k, (cv_, fin) in enumerate(carry):
        b0 = cstep*k
        for j, f in enumerate(cv_): cs.setdefault(b0 + j, []).append(f)
        cs.setdefault(b0 + 4, []).append(fin[0])
        defer(k, fin, b0 + 6 if SPREAD[k] == 2 else None)
    def tail(em_carry):
        cm("---- last quarter of the last row ----")
        a("s_nop 7")
        for n in sorted(em_carry):
            for f in em_carry[n]: f()
    def prof_dump(em):
        if not T0: return
        b = em.a
        b("s_waitcnt vmcnt(0)")
        if PM == 1: b(f"s_memrealtime s[{70+14}:{71+14}]")
        b("s_waitcnt lgkmcnt(0)")
        b("s_load_dwordx2 s[4:5], s[0:1], 40")
        b("s_waitcnt lgkmcnt(0)")
        b("s_mov_b32 s8, s4"); b("s_and_b32 s9, s5, 0xffff"); b("s_mov_b32 s10, 0x10000000"); b("s_mov_b32 s11, 0x20000")
        b("v_mov_b32 v1, 0")
        for i in range(8): b(f"v_writelane_b32 v1, s{70+2*i}, {i}")
        b(f"v_writelane_b32 v1, s{s_R}, 14")
        b("s_sub_u32 s86, s88, s86")
        b(f"v_writelane_b32 v1, s86, 13")
        b("s_getreg_b32 s87, hwreg(HW_REG_XCC_ID)")
        b(f"v_writelane_b32 v1, s87, 12")
        b(f"s_lshl_b32 s6, s2, 2"); b(f"s_add_u32 s6, s6, s{s_w}"); b("s_lshl_b32 s6, s6, 6")
        b("v_lshlrev_b32 v3, 2, v0")
        b("v_cmp_gt_u32 vcc, 16, v0")
        b("s_and_saveexec_b64 s[12:13], vcc")
        b("buffer_store_dword v1, v3, s[8:11], s6 offen")
        b("s_waitcnt vmcnt(0)")
    nxt = cs
    saved = None
    tl = ints(opt.get("tl", "2,3,4,5,6,8,10"))
    for i in range(2, 13):
        if i == 12:
            a(f"s_cmp_eq_u32 s{s_R}, 12")
            a("s_cbranch_scc1 L_tail12")
            saved = (e.clone(), dict(nxt), list(pkfree), list(rbfree))
        if i in tl: stamp(1 + tl.index(i), 5)
        if i == 3: stamp(7, 7)
        nxt = steady(i, nxt)
    stamp(6); cstamp(1)
    tail(nxt)
    prof_dump(e)
    a("s_endpgm")
    em0, nx0, pk0, rb0 = saved
    L_main = e.L
    e.L = []; e.vm = em0.vm; e.lg = em0.lg; e.vm_done = em0.vm_done; e.lg_done = em0.lg_done
    pkfree[:] = pk0; rbfree[:] = rb0
    e.lab("L_tail12")
    stamp(6); cstamp(1)
    tail(nx0)
    prof_dump(e)
    e.lab("L_end")
    a("s_endpgm")
    e.lab("L_codeend")
    body = "\n".join(L_main + e.L)
    hdr = f"""; ConvTranspose2d(k=4, stride 2, pad 1), NHWC bf16: x[224][224][96], w[4][4][96][96], b[96] -> out[448][448][96]
; @launch grid=(256,1,1) block=(256,1,1) lds={LDS}
.amdgcn_target "amdgcn-amd-amdhsa--gfx950"
.text
.globl {KNAME}
.p2align 8
.type {KNAME},@function
{KNAME}:
{body}
.section .rodata,"a"
.p2align 6
.amdhsa_kernel {KNAME}
  .amdhsa_next_free_vgpr 512
  .amdhsa_next_free_sgpr 100
  .amdhsa_accum_offset 256
  .amdhsa_group_segment_fixed_size 0
  .amdhsa_kernarg_size 48
  .amdhsa_user_sgpr_count 2
  .amdhsa_user_sgpr_kernarg_segment_ptr 1
  .amdhsa_system_sgpr_workgroup_id_x 1
.end_amdhsa_kernel
"""
    return hdr

if __name__ == "__main__":
    import mk
    out = sys.argv[1] if len(sys.argv) > 1 else "final.s"
    opt = {}
    for x in sys.argv[2:]:
        k, v = x.split("=")
        opt[k] = int(v) if v.lstrip("-").isdigit() else v
    open(out, "w").write(gen(opt))
    print(mk.build(out))
```

```python
import sys
KNAME = "standalone__transposed_strided__vision_kernel"
XB = 9633792; WB = 294912; OB = 38535168
XROW = 224*192
OROW2 = 2*448*192
CH = 6160
XBASE = 73984
NS = 5
SLOT = 4096
LDS = XBASE + 4*NS*SLOT

class Em:
    def __init__(s):
        s.L = []; s.vm = []; s.lg = []; s.vm_done = 0; s.lg_done = 0
    def clone(s):
        e = Em(); e.vm = list(s.vm); e.lg = list(s.lg); e.vm_done = s.vm_done; e.lg_done = s.lg_done
        return e
    def a(s, t): s.L.append("    " + t)
    def c(s, t): s.L.append("    ; " + t)
    def lab(s, t): s.L.append(t + ":")
    def vmem(s, tag, t): s.a(t); s.vm.append(tag)
    def lds(s, tag, t): s.a(t); s.lg.append(tag)
    def wait_vm(s, tag):
        idx = max(i for i, x in enumerate(s.vm) if x == tag) + 1
        if idx <= s.vm_done: return
        n = len(s.vm) - idx
        assert n <= 63
        s.a(f"s_waitcnt vmcnt({n})"); s.vm_done = idx
    def wait_lg(s, tag):
        idx = max(i for i, x in enumerate(s.lg) if x == tag) + 1
        if idx <= s.lg_done: return
        n = len(s.lg) - idx
        assert n <= 15, (n, tag)
        s.a(f"s_waitcnt lgkmcnt({n})"); s.lg_done = idx

def ints(x): return [int(v) for v in str(x).split(",")]

def gen(opt):
    stf = opt.get("stflags", "sc1")
    T0 = opt.get("prof", False)
    PM = opt.get("pm", 1)
    NDT = opt.get("ndt", 3)
    e = Em(); a = e.a; cm = e.c
    V = 0
    def alloc(n, al=1):
        nonlocal V
        V = (V + al - 1)//al*al
        r = V; V += n; return r
    v_tid = alloc(1)
    vT = alloc(5)
    vPf = alloc(1)
    vX = alloc(4)
    vWd = alloc(3)
    vB = alloc(2)
    vW = alloc(2)
    vO = alloc(1)
    vBi = alloc(1)
    vD = alloc(1)
    vE = alloc(2)
    vER = alloc(2)
    vP = alloc(3)
    vTr3 = alloc(3)
    vTw = alloc(1, 2); vTr = alloc(1)
    vF = [alloc(24, 4) for _ in range(3)]
    NQ = 14
    vAcc = alloc(4*NQ, 4)
    vBias = alloc(24, 4)
    NPK = 3
    vPk = alloc(4*NPK, 4)
    NRB = 4
    vRb = alloc(4*NRB, 4)
    vWv = alloc(32, 4)
    assert V <= 256, V
    def wfrag(f):
        return (f"a[{4*f}:{4*f+3}]" if f < 64 else f"v[{vWv+4*(f-64)}:{vWv+4*(f-64)+3}]")
    def whalf(f, h):
        if f < 64: return f"a[{4*f+2*h}:{4*f+2*h+1}]"
        r = vWv+4*(f-64)+2*h
        return f"v[{r}:{r+1}]"
    def Ffrag(row, b, ks):
        r = vF[row % 3] + 4*(b*3+ks)
        return f"v[{r}:{r+3}]"
    def q4(r): return f"v[{r}:{r+3}]"
    sX, sX2, sW, sBs, sO = 12, 16, 20, 24, 28
    s_w, s_wh, s_o, s_px, s_py, s_strip, s_band, s_m0, s_R = 32, 33, 34, 35, 36, 37, 38, 39, 40
    s_t0, s_t1, s_t2, s_t3 = 41, 42, 43, 44
    s_xrow, s_iy, s_xb, s_pb, s_wmb = 45, 46, 47, 48, 49
    s_wo = 50
    s_or = 56
    s_mk = 60
    s_pc = 66
    s_o01 = 92
    s_e0, s_e1, s_iw = 96, 97, 98
    def stamp(i, pm=1):
        if T0 and pm == PM: a(f"s_mem{'time' if pm >= 6 else 'realtime'} s[{70+2*i}:{71+2*i}]")
    def cstamp(i):
        if T0: a(f"s_memtime s[{86+2*i}:{87+2*i}]")
    def qabk(q):
        aa = 1 - q//6; b = (q % 6)//3; ks = q % 3
        return aa, b, ks
    def wconst(q):
        aa, b, ks = qabk(q)
        return (8*aa + 2*b)*18432 + ks*6144
    t1, t2, t3, t4, t5 = [vT+i for i in range(5)]
    EROWS = [tuple(int(v) for v in x.split(":")) for x in str(opt.get("erows", "-1:4,5:9")).split(",")]

    cm("---- decode workgroup / wave, start the L2 prefetches as early as possible ----")
    for pm in (1, 2, 3, 5): stamp(0, pm)
    a("s_cmp_ge_u32 s2, 256")
    a("s_cbranch_scc1 L_end")
    a("s_load_dwordx4 s[4:7], s[0:1], 0")
    a("s_load_dwordx4 s[8:11], s[0:1], 16")
    a(f"v_lshrrev_b32 v{t4}, 6, v0")
    a(f"s_getpc_b64 s[{s_pc}:{s_pc+1}]")
    e.lab("L_pc")
    a(f"v_readfirstlane_b32 s{s_w}, v{t4}")
    a(f"v_and_b32 v0, 63, v0")
    assert vTw % 2 == 0 and vTr == vTw + 1
    a(f"s_lshr_b32 s{s_iw}, s2, 3")
    a(f"s_lshl2_add_u32 s{s_iw}, s{s_iw}, s{s_w}")
    cm("each wave pulls one 128-byte line of this kernel's code into L2")
    a(f"s_lshl_b32 s{s_t0}, s{s_iw}, 7")
    a(f"s_min_u32 s{s_t0}, s{s_t0}, L_codeend-L_pc-4")
    a(f"s_add_u32 s{s_t0}, s{s_t0}, s{s_pc}")
    a(f"s_addc_u32 s{s_t1}, s{s_pc+1}, 0")
    a(f"v_mov_b32 v{vTw}, s{s_t0}")
    a(f"v_mov_b32 v{vTw+1}, s{s_t1}")
    LUT = opt.get("slotlut", "0x37652104")
    if LUT != "none":
        a(f"s_and_b32 s{s_t0}, s2, 7")
        a(f"s_lshl_b32 s{s_t0}, s{s_t0}, 2")
        a(f"s_or_b32 s{s_t0}, s{s_t0}, 0x30000")
        a(f"s_bfe_u32 s{s_t0}, {LUT}, s{s_t0}")
    else:
        a(f"s_and_b32 s{s_t0}, s2, 7")
    a(f"s_lshr_b32 s{s_t1}, s2, 5")
    e.vmem("PF", f"global_load_dword v{vPf}, v[{vTw}:{vTw+1}], off")
    cm("unit group c: 13-row groups (c < 28) on slots 0..3: c = 7*slot + grp (grp < 7), c = 60 + slot (grp == 7);")
    cm("slots 4..7: c = 28 + 8*(slot-4) + grp.  c == 63 has no work.")
    a(f"s_mul_i32 s{s_t2}, s{s_t0}, 7")
    a(f"s_add_u32 s{s_t2}, s{s_t2}, s{s_t1}")
    a(f"s_add_u32 s{s_t3}, s{s_t0}, 60")
    a(f"s_cmp_eq_u32 s{s_t1}, 7")
    a(f"s_cselect_b32 s{s_t2}, s{s_t3}, s{s_t2}")
    a(f"s_lshl3_add_u32 s{s_t3}, s{s_t0}, s{s_t1}")
    a(f"s_sub_u32 s{s_t3}, s{s_t3}, 4")
    a(f"s_cmp_lt_u32 s{s_t0}, 4")
    a(f"s_cselect_b32 s{s_t1}, s{s_t2}, s{s_t3}")
    a(f"s_cmp_ge_u32 s{s_t1}, 63")
    a("s_cbranch_scc1 L_end")
    a(f"s_bfe_u32 s{s_px}, s2, 0x10003")
    a(f"s_bfe_u32 s{s_py}, s2, 0x10004")
    a(f"s_lshl2_add_u32 s{s_t1}, s{s_t1}, s{s_w}")
    a(f"s_mul_i32 s{s_band}, s{s_t1}, 4682")
    a(f"s_lshr_b32 s{s_band}, s{s_band}, 16")
    a(f"s_mul_i32 s{s_t0}, s{s_band}, 14")
    a(f"s_sub_u32 s{s_strip}, s{s_t1}, s{s_t0}")
    a(f"s_min_u32 s{s_t0}, s{s_band}, 8")
    a(f"s_mul_i32 s{s_m0}, s{s_band}, 12")
    a(f"s_add_u32 s{s_m0}, s{s_m0}, s{s_t0}")
    cm("x L2 prefetch: the 4 phase workgroups of a group each touch 7 of the 28 lines of a row segment")
    a(f"v_mul_u32_u24 v{vER}, 9363, v0")
    a(f"s_lshl1_add_u32 s{s_t0}, s{s_py}, s{s_px}")
    a(f"v_lshrrev_b32 v{vER}, 16, v{vER}")
    a(f"s_mul_i32 s{s_t0}, s{s_t0}, 7")
    a(f"v_mul_u32_u24 v{t5}, 7, v{vER}")
    a(f"s_mul_i32 s{s_t1}, s{s_strip}, 24")
    a(f"v_sub_u32 v{t5}, v0, v{t5}")
    a(f"s_add_u32 s{s_t0}, s{s_t0}, s{s_t1}")
    a(f"s_sub_u32 s{s_t0}, s{s_t0}, 2")
    a(f"v_add_u32 v{t5}, s{s_t0}, v{t5}")
    a(f"v_max_i32 v{t5}, 0, v{t5}")
    a(f"v_lshlrev_b32 v{vER+1}, 7, v{t5}")
    a(f"s_movk_i32 s{s_e0}, 223")
    a(f"s_mov_b32 s{s_e1}, {XROW}")
    def e_addr(k):
        a(f"s_add_i32 s{s_t1}, s{s_m0}, {EROWS[k][0]}")
        a(f"v_add_u32 v{t5}, s{s_t1}, v{vER}")
        a(f"v_med3_i32 v{t5}, v{t5}, 0, s{s_e0}")
        a(f"v_mad_u32_u24 v{vE+k}, v{t5}, s{s_e1}, v{vER+1}")
    e_addr(0)
    cm("weight L2 prefetch: 18 lines per wave")
    a(f"s_mul_i32 s{s_t0}, s{s_iw}, {18*128}")
    a(f"v_lshlrev_b32 v{t4}, 7, v0")
    a(f"v_add_u32 v{vD}, s{s_t0}, v{t4}")
    for s_, size in ((sX, XB), (sW, WB)):
        a(f"s_mov_b32 s{s_+2}, {size}")
        a(f"s_mov_b32 s{s_+3}, 0x20000")
    a("s_waitcnt lgkmcnt(0)")
    stamp(1); stamp(1, 3)
    for s_, p in ((sX, 4), (sW, 6)):
        a(f"s_mov_b32 s{s_}, s{p}")
        a(f"s_and_b32 s{s_+1}, s{p+1}, 0xffff")
    def touch(tag, nl, vaddr, srd):
        a(f"s_mov_b32 exec_lo, {hex((1 << min(nl, 32)) - 1)}")
        a(f"s_mov_b32 exec_hi, {hex((1 << max(nl - 32, 0)) - 1)}")
        e.vmem(tag, f"buffer_load_dword v{vPf}, v{vaddr}, s[{srd}:{srd+3}], 0 offen")
        a("s_mov_b64 exec, -1")
    touch("TE", 7*EROWS[0][1], vE, sX)
    touch("TD", 18, vD, sW)
    stamp(2, 3)

    cm("---- addresses of the LDS-DMA loads ----")
    for s_, p, size in ((sX2, 4, None), (sBs, 8, 192), (sO, 10, OB)):
        a(f"s_mov_b32 s{s_}, s{p}")
        a(f"s_and_b32 s{s_+1}, s{p+1}, 0xffff")
        if size: a(f"s_mov_b32 s{s_+2}, {size}")
        a(f"s_mov_b32 s{s_+3}, 0x20000")
    a(f"s_add_u32 s{s_iy}, s{s_m0}, s{s_py}")
    a(f"s_sub_u32 s{s_iy}, s{s_iy}, 1")
    a(f"s_mul_i32 s{s_xrow}, s{s_iy}, {XROW}")
    a(f"s_lshl4_add_u32 s{s_t0}, s{s_strip}, s{s_px}")
    a(f"s_sub_u32 s{s_t1}, s{s_t0}, 1")
    a(f"s_mulk_i32 s{s_t1}, 192")
    a(f"s_cmp_eq_u32 s{s_t0}, 0")
    a(f"s_cselect_b32 s{s_t2}, 12, 0")
    a(f"s_cmpk_gt_u32 s{s_t0}, 208")
    a(f"s_cselect_b32 s{s_t3}, 0, 12")
    a(f"s_mov_b32 s{s_mk}, 0")
    a(f"s_mov_b32 s{s_mk+1}, 0xffff0000")
    a(f"s_mov_b32 s{s_mk+2}, -1")
    a(f"s_mov_b32 s{s_mk+3}, 0")
    a(f"s_mov_b32 s{s_mk+4}, 0xffff0000")
    a(f"s_mov_b32 s{s_mk+5}, -1")
    a(f"v_lshlrev_b32 v{vWd}, 4, v0")
    a(f"v_xor_b32 v{t1}, 32, v{vWd}")
    a(f"v_add_u32 v{t1}, s{s_t1}, v{t1}")
    a(f"v_add_u32 v{vX+3}, s{s_t1}, v{vWd}")
    a(f"v_bfrev_b32 v{t3}, 1")
    a(f"v_cmp_gt_u32 vcc, s{s_t2}, v0")
    a(f"v_cndmask_b32 v{vX}, v{vX+3}, v{t1}, s[{s_mk}:{s_mk+1}]")
    a(f"v_cndmask_b32 v{vX+1}, v{vX+3}, v{t1}, s[{s_mk+2}:{s_mk+3}]")
    a(f"v_cndmask_b32 v{vX}, v{vX}, v{t3}, vcc")
    a(f"v_cmp_le_u32 vcc, s{s_t3}, v0")
    a(f"v_cndmask_b32 v{vX+2}, v{vX+3}, v{t1}, s[{s_mk+4}:{s_mk+5}]")
    a(f"v_lshrrev_b32 v{t2}, 5, v0")
    a(f"v_cndmask_b32 v{vX+3}, v{vX+3}, v{t3}, vcc")
    a(f"v_mul_u32_u24 v{t2}, 1536, v{t2}")
    a(f"v_add_u32 v{vWd+1}, v{vWd}, v{t2}")
    a(f"v_add_u32 v{vWd+2}, 1536, v{vWd}")
    a(f"s_lshr_b32 s{s_wh}, s{s_w}, 1")
    a(f"s_and_b32 s{s_o}, s{s_w}, 1")
    a(f"s_lshl2_add_u32 s{s_t0}, s{s_py}, s{s_px}")
    a(f"s_sub_u32 s{s_t0}, 5, s{s_t0}")
    a(f"s_mul_i32 s{s_pb}, s{s_t0}, 18432")
    a(f"s_mul_i32 s{s_t0}, s{s_o}, 1536")
    a(f"s_add_u32 s{s_pb}, s{s_pb}, s{s_t0}")
    a(f"s_mul_i32 s{s_t2}, s{s_o}, 3080")
    a(f"s_mul_i32 s{s_t3}, s{s_wh}, {CH}")
    a(f"s_add_u32 s{s_wmb}, s{s_t2}, s{s_t3}")
    a(f"s_mul_i32 s{s_xb}, s{s_w}, {NS*SLOT}")
    a(f"s_add_u32 s{s_xb}, s{s_xb}, {XBASE}")
    def wo_calc(j):
        c0, c1 = wconst(2*j), wconst(2*j+1)
        a(f"s_cmp_eq_u32 s{s_wh}, 0")
        a(f"s_mov_b32 s{s_t0}, {c1}")
        a(f"s_cselect_b32 s{s_t0}, {c0}, s{s_t0}")
        a(f"s_add_u32 s{s_wo+j}, s{s_t0}, s{s_pb}")
    a(f"v_lshrrev_b32 v{t2}, 4, v0")
    a(f"v_and_b32 v{t3}, 15, v0")
    a(f"v_lshlrev_b32 v{vBi}, 4, v{t2}")

    def xrow_dma(r):
        L = []
        chk = r in (0, 12, 13)
        srd = sX2 if chk else sX
        def pre():
            if chk:
                a(f"s_cmp_lt_u32 s{s_iy}, 224")
                a(f"s_cselect_b32 s{sX2+2}, {XB}, 0")
            a(f"s_add_u32 m0, s{s_xb}, {(r % NS)*SLOT}")
        L.append(pre)
        for k in range(4):
            def ld(k=k):
                off = f" offset:{1024*k}" if k else ""
                if k == 3: a("s_mov_b64 exec, 0xfff")
                e.vmem(f"X{r}", f"buffer_load_dwordx4 v{vX+k}, s[{srd}:{srd+3}], s{s_xrow} offen{off} lds")
                if k == 3:
                    a("s_mov_b64 exec, -1")
                    a(f"s_add_u32 s{s_xrow}, s{s_xrow}, {XROW}")
                    if r in (0, 11, 12) or True: a(f"s_add_u32 s{s_iy}, s{s_iy}, 1")
            L.append(ld)
        return L
    def w_dma(j):
        L = []
        def pre():
            wo_calc(j)
            a(f"s_add_u32 m0, s{s_wmb}, {2*j*CH}")
        L.append(pre)
        for k in range(3):
            def ld(k=k):
                off = f" offset:{1024*k}" if k else ""
                e.vmem(f"W{j}", f"buffer_load_dwordx4 v{vWd+k}, s[{sW}:{sW+3}], s{s_wo+j} offen{off} lds")
            L.append(ld)
        return L
    vbt = vAcc
    def bi_loads():
        L = [lambda: None]
        for p in range(3):
            L.append(lambda p=p: e.vmem("BI", f"buffer_load_dwordx4 {q4(vbt+4*p)}, v{vBi}, s[{sBs}:{sBs+3}], 0 offen offset:{64*p}"))
        return L
    def grp(name):
        k, n = name[0], name[1:]
        if k == "X": return xrow_dma(int(n))
        if k == "W": return w_dma(int(n))
        if k == "B": return bi_loads()
        if k == "E": return [lambda: None, lambda: touch("TE", 7*EROWS[int(n)][1], vE + int(n), sX)]
        raise ValueError(name)
    def run(L):
        for i, f in enumerate(L):
            f()
            if i == 0: a("s_nop 0")
    def f_reads(r):
        L = []
        for b in range(2):
            for ks in range(3):
                def rd(b=b, ks=ks):
                    e.lds(f"F{r}", f"ds_read_b128 {Ffrag(r, b, ks)}, v{vB+b} offset:{(r % NS)*SLOT + 64*ks}")
                L.append(rd)
        return L
    def part_B():
        cm("---- LDS read addresses, store addresses ----")
        for b in range(2):
            a(f"v_add_u32 v{t4}, {1-b}, v{t3}")
            a(f"v_mul_u32_u24 v{t5}, 192, v{t4}")
            a(f"v_add_u32 v{t5}, v{t5}, v{vBi}")
            a(f"v_lshlrev_b32 v{t4}, 3, v{t4}")
            a(f"v_and_b32 v{t4}, 32, v{t4}")
            a(f"v_xor_b32 v{t5}, v{t5}, v{t4}")
            a(f"v_add_u32 v{vB+b}, s{s_xb}, v{t5}")
        a(f"v_and_b32 v{t4}, 1, v{t2}")
        a(f"v_mul_u32_u24 v{t4}, 3080, v{t4}")
        a(f"v_lshrrev_b32 v{t5}, 1, v{t2}")
        a(f"v_mul_u32_u24 v{t5}, 1536, v{t5}")
        a(f"v_add_u32 v{t4}, v{t4}, v{t5}")
        a(f"v_lshrrev_b32 v{t5}, 2, v{t3}")
        a(f"v_mul_u32_u24 v{t5}, 192, v{t5}")
        a(f"v_add_u32 v{t4}, v{t4}, v{t5}")
        a(f"v_and_b32 v{t5}, 3, v{t3}")
        a(f"v_lshlrev_b32 v{t5}, 4, v{t5}")
        a(f"v_add_u32 v{vW}, v{t4}, v{t5}")
        a(f"v_add_u32 v{vW+1}, {6*CH}, v{vW}")
        e_addr(1)
        a(f"s_lshl1_add_u32 s{s_t0}, s{s_m0}, s{s_py}")
        a(f"s_mulk_i32 s{s_t0}, 448")
        a(f"s_lshl_b32 s{s_t1}, s{s_strip}, 5")
        a(f"s_add_u32 s{s_t0}, s{s_t0}, s{s_t1}")
        a(f"s_add_u32 s{s_t0}, s{s_t0}, s{s_px}")
        a(f"s_mul_i32 s{s_o01}, s{s_t0}, 192")
        for k in range(1, NDT): a(f"s_add_u32 s{s_o01+k}, s{s_o01+k-1}, {OROW2}")
        a(f"s_add_u32 s{s_or+1}, s{s_o01}, {OROW2}")
        a(f"s_cmp_lt_u32 s{s_band}, 8")
        a(f"s_cselect_b32 s{s_R}, 13, 12")
        a(f"s_mul_i32 s{s_t0}, s{s_w}, {(NDT+1)*3072}")
        a(f"v_lshrrev_b32 v{t4}, 1, v{t3}")
        a(f"v_and_b32 v{t4}, 3, v{t4}")
        a(f"v_xor_b32 v{t4}, v{t4}, v{t2}")
        a(f"v_lshlrev_b32 v{t4}, 4, v{t4}")
        a(f"v_mul_u32_u24 v{t5}, 192, v{t3}")
        a(f"v_add3_u32 v{vTw}, v{t4}, v{t5}, s{s_t0}")
        for i in range(3):
            a(f"v_add_u32 v{t4}, {64*i}, v0")
            a(f"v_mul_u32_u24 v{t5}, 5462, v{t4}")
            a(f"v_lshrrev_b32 v{t5}, 16, v{t5}")
            a(f"v_mul_u32_u24 v{t1}, 12, v{t5}")
            a(f"v_sub_u32 v{t1}, v{t4}, v{t1}")
            a(f"v_lshlrev_b32 v{t1}, 4, v{t1}")
            a(f"v_mul_u32_u24 v{vP+i}, 384, v{t5}")
            a(f"v_add_u32 v{vP+i}, v{vP+i}, v{t1}")
            a(f"v_bfe_u32 v{t5}, v{t5}, 1, 2")
            a(f"v_xor_b32 v{t4}, v{t4}, v{t5}")
            a(f"v_lshlrev_b32 v{t4}, 4, v{t4}")
            a(f"v_add_u32 v{vTr3+i}, s{s_t0}, v{t4}")
        a(f"v_mul_u32_u24 v{t4}, 384, v{t3}")
        a(f"v_add_u32 v{vO}, v{t4}, v{vBi}")
    pre = str(opt.get("pre", "B,W0,X0,X1|W1,W2,X2,W3")).split("|")
    preA = pre[0].split(","); preB = pre[1].split(",") if len(pre) > 1 and pre[1] else []
    BF = opt.get("bfirst", 1)
    if BF: part_B()
    cm("---- first loads ----")
    for g_ in preA: run(grp(g_))
    stamp(3, 3)
    if not BF: part_B()
    for g_ in preB: run(grp(g_))
    stamp(4, 3)
    e.wait_vm("BI")
    stamp(5, 3)
    cm("bias -> fp32 accumulator initial values")
    for p in range(3):
        for h in range(2):
            for r in range(4):
                src = vbt + 4*p + (4*h+r)//2
                dst = vBias + 4*(2*p+h) + r
                if r & 1: a(f"v_and_b32 v{dst}, 0xffff0000, v{src}")
                else: a(f"v_lshlrev_b32 v{dst}, 16, v{src}")
    e.wait_vm("X0")
    for f in f_reads(0): f()
    e.wait_vm("X1")
    stamp(6, 3)
    for f in f_reads(1): f()

    cm("---- first pass: output rows 0 and 1, weights stream LDS -> registers ----")
    free = list(range(NQ))
    def take(): return vAcc + 4*free.pop(0)
    def give(r): free.append((r - vAcc)//4)
    acc = [[take() for t in range(6)] for tile in range(2)]
    LAG = opt.get("lag", 5)
    def rd_half(f, half):
        q, t = divmod(f, 6); p, h = divmod(t, 2)
        off = (q % 6)*CH + half*768 + 64*p + 8*h
        e.lds(f"R{f}", f"ds_read_b64_tr_b16 {whalf(f, half)}, v{vW + q//6} offset:{off}")
    def mf(d, f, bfr, c):
        a(f"v_mfma_f32_16x16x32_bf16 {q4(d)}, {wfrag(f)}, {bfr}, {q4(c)}")
    ex = {}
    def atg(G, f): ex.setdefault(G, []).append(f)
    for item in str(opt.get("inp", "W4@0,W5@3,X3@6,X4@10,E1@14")).split(","):
        if not item: continue
        name, pos = item.split("@"); pos = int(pos)
        L = grp(name)
        atg(2*pos, L[0])
        step = opt.get("pace", 1)
        for k, f in enumerate(L[1:]): atg(2*(pos + k*step) + 1, f)
    f2 = opt.get("f2pos", 29)
    atg(2*f2, lambda: e.wait_vm("X2"))
    for i, f in enumerate(f_reads(2)): atg(2*(f2+1+i) + 1, f)
    f3 = opt.get("f3pos", 60)
    atg(2*f3, lambda: e.wait_vm("X3"))
    for i, f in enumerate(f_reads(3)): atg(2*(f3+1+i) + 1, f)
    def stage_gate(n):
        if n < 72 and n % 12 == 0:
            e.wait_vm(f"W{n//12}")
            a("s_barrier")
            if n == 0: stamp(3); stamp(7, 3)
            stamp(1 + n//12, 2); stamp(n//12, 7)
    for n in range(LAG):
        stage_gate(n)
        rd_half(n, 0); rd_half(n, 1)
    for m in range(72):
        n = m + LAG
        q, t = divmod(m, 6); aa, b, ks = qabk(q)
        if m == 0: e.wait_lg("F1")
        if m == 36: e.wait_lg("F2")
        e.wait_lg(f"R{m}")
        if m == 0: stamp(4)
        for tile in range(2):
            row = tile + (1 - aa)
            c = (vBias + 4*t) if q == 0 else acc[tile][t]
            mf(acc[tile][t], m, Ffrag(row, b, ks), c)
            if tile == 0: stage_gate(n)
            if n < 72: rd_half(n, tile)
            for f in ex.get(2*m + tile, []): f()
    assert (NDT+1)*3072*4 <= 55000
    stamp(5); stamp(7, 2); stamp(6, 7); cstamp(0)

    pkfree = [vPk + 4*i for i in range(NPK)]
    rbfree = [vRb + 4*i for i in range(NRB)]
    LTMAX = opt.get("ltmax", 11)
    def epi_ops(accq, p, tile):
        A, B = accq
        lt = tile <= LTMAX
        box = {}
        cv = (lambda t: None) if opt.get("nocvt") else a
        def c0():
            box["pk"] = pkfree.pop(0)
            cv(f"v_cvt_pk_bf16_f32 v{box['pk']}, v{A}, v{A+1}")
        def c1(): cv(f"v_cvt_pk_bf16_f32 v{box['pk']+1}, v{A+2}, v{A+3}"); give(A)
        def c2(): cv(f"v_cvt_pk_bf16_f32 v{box['pk']+2}, v{B}, v{B+1}")
        def c3(): cv(f"v_cvt_pk_bf16_f32 v{box['pk']+3}, v{B+2}, v{B+3}"); give(B)
        off = f" offset:{64*p}" if p else ""
        fl = (" " + stf) if stf else ""
        buf = (tile if tile < NDT else NDT)*3072
        def wr():
            e.lds(f"T{tile}w{p}", f"ds_write_b128 v{vTw}, {q4(box['pk'])} offset:{buf + 64*p}")
            pkfree.append(box["pk"])
        def st():
            if not opt.get("nost"):
                e.vmem("ST", f"buffer_store_dwordx4 {q4(box['pk'])}, v{vO}, s[{sO}:{sO+3}], s{s_or + tile % 4} offen{off}{fl}")
            pkfree.append(box["pk"])
        return [c0, c1], [c2, c3], (wr if lt else st)
    def out_ops(tile, i):
        box = {}
        buf = (tile if tile < NDT else NDT)*3072
        fl = (" " + stf) if stf else ""
        def rd():
            box["rb"] = rbfree.pop(0)
            e.lds(f"T{tile}r{i}", f"ds_read_b128 {q4(box['rb'])}, v{vTr3+i} offset:{buf}")
        def wt(): e.wait_lg(f"T{tile}r{i}")
        def st():
            so = (s_o01 + tile) if tile < NDT else (s_or + tile % 4)
            if not opt.get("nost"):
                e.vmem("ST", f"buffer_store_dwordx4 {q4(box['rb'])}, v{vP+i}, s[{sO}:{sO+3}], s{so} offen{fl}")
            rbfree.append(box["rb"])
        return rd, wt, st
    SPREAD = ints(opt.get("spread", {2: "2,3,4,5,6,7", 3: "3,4,5,6,7,8,9,10,11", 4: "4,4,5,6,6,7,8,8,9,10,10,11"}[NDT]))
    deferred = {}
    def defer(k):
        tl_ = SPREAD[k]
        nth = len([1 for kk in range(k) if SPREAD[kk] == tl_])
        p0 = ints(opt.get("defpos", "40,52,64"))[nth]
        rd, wt, st = out_ops(k//3, k % 3)
        deferred.setdefault(tl_, []).extend([(p0, rd), (p0 + 6, wt), (p0 + 7, st)])
    for k in range(3*NDT): defer(k)
    carry = []
    for tile in range(2):
        for p in range(3):
            c01, c23, fin = epi_ops((acc[tile][2*p], acc[tile][2*p+1]), p, tile)
            carry.append((c01 + c23, fin))
    def steady(i, carry_sched):
        cm(f"---- output row {i} ----")
        ex = {}
        def put(n, f): ex.setdefault(n, []).append(f)
        for n, L in carry_sched.items():
            for f in L: put(n, f)
        for n, f in deferred.get(i, []): put(n, f)
        put(1, lambda: a(f"s_add_u32 s{s_or + i % 4}, s{s_or + (i-1) % 4}, {OROW2}"))
        if i == 2: put(4, lambda: e.wait_lg("F3"))
        r = i + 2
        if i + 3 <= 13:
            L = xrow_dma(i + 3)
            dp = ints(opt.get("dma2", "50,55,60,65")) if i == 2 else ints(opt.get("dmapos", "2,4,26,28"))
            put(dp[0] - 1, L[0])
            for k in range(4): put(dp[k], L[1+k])
        if r <= 13:
            put(opt.get("xwpos", 40), lambda: e.wait_vm(f"X{r}"))
            rp = ints(opt.get("rdpos", "41,42,43,50,51,52"))
            for k, f in enumerate(f_reads(r)): put(rp[k], f)
            put(66, lambda: e.wait_lg(f"F{r}"))
        accs = []
        nxt = {}
        for t in range(6):
            d = take(); accs.append(d)
            for q in range(12):
                n = 12*t + q
                aa, b, ks = qabk(q)
                row = i + (1 - aa)
                c = (vBias + 4*t) if q == 0 else d
                if PM == 6 and i == opt.get("ptile", 2) and q == 0: stamp(t, 6)
                if PM == 6 and i == opt.get("ptile", 2) + 1 and n == 0: stamp(6, 6)
                if PM == 6 and i == opt.get("ptile", 2) + 1 and n == 36: stamp(7, 6)
                mf(d, q*6 + t, Ffrag(row, b, ks), c)
                for f in ex.get(n, []): f()
            if t % 2 == 1:
                p = t//2
                c01, c23, fin = epi_ops((accs[t-1], accs[t]), p, i)
                base = 12*t + 12
                tgt = [(base + 0, c01[0]), (base + 1, c01[1]), (base + 8, c23[0]), (base + 9, c23[1]), (base + 10, fin)]
                if p == 2 and NDT <= i <= LTMAX:
                    rp_ = ints(opt.get("ltrd", "11,12,13")); sp_ = ints(opt.get("ltst", "20,25,30"))
                    for k_ in range(3):
                        rd, wt, st = out_ops(i, k_)
                        tgt += [(72 + rp_[k_], rd), (72 + sp_[k_] - 1, wt), (72 + sp_[k_], st)]
                for n_, f in tgt:
                    if n_ < 72: put(n_, f)
                    else: nxt.setdefault(n_ - 72, []).append(f)
        return nxt
    cs = {}
    cstep = opt.get("cstep", 6)
    for k, (cv_, fin) in enumerate(carry):
        b0 = cstep*k
        for j, f in enumerate(cv_): cs.setdefault(b0 + j, []).append(f)
        cs.setdefault(b0 + 4, []).append(fin)
    def tail(em_carry):
        cm("---- last quarter of the last row ----")
        a("s_nop 7")
        for n in sorted(em_carry):
            for f in em_carry[n]: f()
    def prof_dump(em):
        if not T0: return
        b = em.a
        b("s_waitcnt vmcnt(0)")
        if PM == 1: b(f"s_memrealtime s[{70+14}:{71+14}]")
        b("s_waitcnt lgkmcnt(0)")
        b("s_load_dwordx2 s[4:5], s[0:1], 40")
        b("s_waitcnt lgkmcnt(0)")
        b("s_mov_b32 s8, s4"); b("s_and_b32 s9, s5, 0xffff"); b("s_mov_b32 s10, 0x10000000"); b("s_mov_b32 s11, 0x20000")
        b("v_mov_b32 v1, 0")
        for i in range(8): b(f"v_writelane_b32 v1, s{70+2*i}, {i}")
        b(f"v_writelane_b32 v1, s{s_R}, 14")
        b("s_sub_u32 s86, s88, s86")
        b(f"v_writelane_b32 v1, s86, 13")
        b("s_getreg_b32 s87, hwreg(HW_REG_XCC_ID)")
        b(f"v_writelane_b32 v1, s87, 12")
        b(f"s_lshl_b32 s6, s2, 2"); b(f"s_add_u32 s6, s6, s{s_w}"); b("s_lshl_b32 s6, s6, 6")
        b("v_lshlrev_b32 v3, 2, v0")
        b("v_cmp_gt_u32 vcc, 16, v0")
        b("s_and_saveexec_b64 s[12:13], vcc")
        b("buffer_store_dword v1, v3, s[8:11], s6 offen")
        b("s_waitcnt vmcnt(0)")
    nxt = cs
    saved = None
    tl = ints(opt.get("tl", "2,3,4,5,6,8,10"))
    for i in range(2, 13):
        if i == 12:
            a(f"s_cmp_eq_u32 s{s_R}, 12")
            a("s_cbranch_scc1 L_tail12")
            saved = (e.clone(), dict(nxt), list(pkfree), list(rbfree))
        if i in tl: stamp(1 + tl.index(i), 5)
        if i == 3: stamp(7, 7)
        nxt = steady(i, nxt)
    stamp(6); cstamp(1)
    tail(nxt)
    prof_dump(e)
    a("s_endpgm")
    em0, nx0, pk0, rb0 = saved
    L_main = e.L
    e.L = []; e.vm = em0.vm; e.lg = em0.lg; e.vm_done = em0.vm_done; e.lg_done = em0.lg_done
    pkfree[:] = pk0; rbfree[:] = rb0
    e.lab("L_tail12")
    stamp(6); cstamp(1)
    tail(nx0)
    prof_dump(e)
    e.lab("L_end")
    a("s_endpgm")
    e.lab("L_codeend")
    body = "\n".join(L_main + e.L)
    hdr = f"""; ConvTranspose2d(k=4, stride 2, pad 1), NHWC bf16: x[224][224][96], w[4][4][96][96], b[96] -> out[448][448][96]
; @launch grid=(256,1,1) block=(256,1,1) lds={LDS}
.amdgcn_target "amdgcn-amd-amdhsa--gfx950"
.text
.globl {KNAME}
.p2align 8
.type {KNAME},@function
{KNAME}:
{body}
.section .rodata,"a"
.p2align 6
.amdhsa_kernel {KNAME}
  .amdhsa_next_free_vgpr 512
  .amdhsa_next_free_sgpr 100
  .amdhsa_accum_offset 256
  .amdhsa_group_segment_fixed_size 0
  .amdhsa_kernarg_size 48
  .amdhsa_user_sgpr_count 2
  .amdhsa_user_sgpr_kernarg_segment_ptr 1
  .amdhsa_system_sgpr_workgroup_id_x 1
.end_amdhsa_kernel
"""
    return hdr

if __name__ == "__main__":
    import mk
    out = sys.argv[1] if len(sys.argv) > 1 else "final.s"
    opt = {}
    for x in sys.argv[2:]:
        k, v = x.split("=")
        opt[k] = int(v) if v.lstrip("-").isdigit() else v
    open(out, "w").write(gen(opt))
    print(mk.build(out))
```

```python
import sys
KNAME = "standalone__transposed_strided__vision_kernel"
XB = 9633792; WB = 294912; OB = 38535168
XROW = 224*192
OROW2 = 2*448*192
CH = 6160
XBASE = 73984
NS = 5
SLOT = 4096
LDS = XBASE + 4*NS*SLOT

class Em:
    def __init__(s):
        s.L = []; s.vm = []; s.lg = []; s.vm_done = 0; s.lg_done = 0
    def clone(s):
        e = Em(); e.vm = list(s.vm); e.lg = list(s.lg); e.vm_done = s.vm_done; e.lg_done = s.lg_done
        return e
    def a(s, t): s.L.append("    " + t)
    def c(s, t): s.L.append("    ; " + t)
    def lab(s, t): s.L.append(t + ":")
    def vmem(s, tag, t): s.a(t); s.vm.append(tag)
    def lds(s, tag, t): s.a(t); s.lg.append(tag)
    def wait_vm(s, tag):
        idx = max(i for i, x in enumerate(s.vm) if x == tag) + 1
        if idx <= s.vm_done: return
        n = len(s.vm) - idx
        assert n <= 63
        s.a(f"s_waitcnt vmcnt({n})"); s.vm_done = idx
    def wait_lg(s, tag):
        idx = max(i for i, x in enumerate(s.lg) if x == tag) + 1
        if idx <= s.lg_done: return
        n = len(s.lg) - idx
        assert n <= 15, (n, tag)
        s.a(f"s_waitcnt lgkmcnt({n})"); s.lg_done = idx

def ints(x): return [int(v) for v in str(x).split(",")]

def gen(opt):
    stf = opt.get("stflags", "sc1")
    T0 = opt.get("prof", False)
    PM = opt.get("pm", 1)
    NDT = opt.get("ndt", 3)
    e = Em(); a = e.a; cm = e.c
    V = 0
    def alloc(n, al=1):
        nonlocal V
        V = (V + al - 1)//al*al
        r = V; V += n; return r
    v_tid = alloc(1)
    vT = alloc(5)
    vPf = alloc(1)
    vX = alloc(4)
    vWd = alloc(3)
    vB = alloc(2)
    vW = alloc(2)
    vO = alloc(1)
    vBi = alloc(1)
    vO2 = alloc(1)
    vD = alloc(1)
    vE = alloc(2)
    vER = alloc(2)
    vP = alloc(3)
    vTw = alloc(1, 2); vTr = alloc(1)
    vF = [alloc(24, 4) for _ in range(3)]
    NQ = 14
    vAcc = alloc(4*NQ, 4)
    vBias = alloc(24, 4)
    NPK = 4
    vPk = alloc(4*NPK, 4)
    NRB = 3
    vRb = alloc(4*NRB, 4)
    vWv = alloc(32, 4)
    assert V <= 256, V
    def wfrag(f):
        return (f"a[{4*f}:{4*f+3}]" if f < 64 else f"v[{vWv+4*(f-64)}:{vWv+4*(f-64)+3}]")
    def whalf(f, h):
        if f < 64: return f"a[{4*f+2*h}:{4*f+2*h+1}]"
        r = vWv+4*(f-64)+2*h
        return f"v[{r}:{r+1}]"
    def Ffrag(row, b, ks):
        r = vF[row % 3] + 4*(b*3+ks)
        return f"v[{r}:{r+3}]"
    def q4(r): return f"v[{r}:{r+3}]"
    sX, sX2, sW, sBs, sO = 12, 16, 20, 24, 28
    s_w, s_wh, s_o, s_px, s_py, s_strip, s_band, s_m0, s_R = 32, 33, 34, 35, 36, 37, 38, 39, 40
    s_t0, s_t1, s_t2, s_t3 = 41, 42, 43, 44
    s_xrow, s_iy, s_xb, s_pb, s_wmb = 45, 46, 47, 48, 49
    s_wo = 50
    s_or = 56
    s_mk = 60
    s_pc = 66
    s_o01 = 92
    s_e0, s_e1, s_iw = 96, 97, 98
    def stamp(i, pm=1):
        if T0 and pm == PM: a(f"s_mem{'time' if pm >= 6 else 'realtime'} s[{70+2*i}:{71+2*i}]")
    def cstamp(i):
        if T0: a(f"s_memtime s[{86+2*i}:{87+2*i}]")
    def qabk(q):
        aa = 1 - q//6; b = (q % 6)//3; ks = q % 3
        return aa, b, ks
    def wconst(q):
        aa, b, ks = qabk(q)
        return (8*aa + 2*b)*18432 + ks*6144
    t1, t2, t3, t4, t5 = [vT+i for i in range(5)]
    EROWS = [tuple(int(v) for v in x.split(":")) for x in str(opt.get("erows", "-1:4,5:9")).split(",")]

    cm("---- decode workgroup / wave, start the L2 prefetches as early as possible ----")
    for pm in (1, 2, 3, 5): stamp(0, pm)
    a("s_cmp_ge_u32 s2, 256")
    a("s_cbranch_scc1 L_end")
    a("s_load_dwordx4 s[4:7], s[0:1], 0")
    a("s_load_dwordx4 s[8:11], s[0:1], 16")
    a(f"v_lshrrev_b32 v{t4}, 6, v0")
    a(f"s_getpc_b64 s[{s_pc}:{s_pc+1}]")
    e.lab("L_pc")
    a(f"v_readfirstlane_b32 s{s_w}, v{t4}")
    a(f"v_and_b32 v0, 63, v0")
    assert vTw % 2 == 0 and vTr == vTw + 1
    a(f"s_lshr_b32 s{s_iw}, s2, 3")
    a(f"s_lshl2_add_u32 s{s_iw}, s{s_iw}, s{s_w}")
    cm("each wave pulls one 128-byte line of this kernel's code into L2")
    a(f"s_lshl_b32 s{s_t0}, s{s_iw}, 7")
    a(f"s_min_u32 s{s_t0}, s{s_t0}, L_codeend-L_pc-4")
    a(f"s_add_u32 s{s_t0}, s{s_t0}, s{s_pc}")
    a(f"s_addc_u32 s{s_t1}, s{s_pc+1}, 0")
    a(f"v_mov_b32 v{vTw}, s{s_t0}")
    a(f"v_mov_b32 v{vTw+1}, s{s_t1}")
    LUT = opt.get("slotlut", "0x37652104")
    if LUT != "none":
        a(f"s_and_b32 s{s_t0}, s2, 7")
        a(f"s_lshl_b32 s{s_t0}, s{s_t0}, 2")
        a(f"s_or_b32 s{s_t0}, s{s_t0}, 0x30000")
        a(f"s_bfe_u32 s{s_t0}, {LUT}, s{s_t0}")
    else:
        a(f"s_and_b32 s{s_t0}, s2, 7")
    a(f"s_lshr_b32 s{s_t1}, s2, 5")
    e.vmem("PF", f"global_load_dword v{vPf}, v[{vTw}:{vTw+1}], off")
    cm("unit group c: 13-row groups (c < 28) on slots 0..3: c = 7*slot + grp (grp < 7), c = 60 + slot (grp == 7);")
    cm("slots 4..7: c = 28 + 8*(slot-4) + grp.  c == 63 has no work.")
    a(f"s_mul_i32 s{s_t2}, s{s_t0}, 7")
    a(f"s_add_u32 s{s_t2}, s{s_t2}, s{s_t1}")
    a(f"s_add_u32 s{s_t3}, s{s_t0}, 60")
    a(f"s_cmp_eq_u32 s{s_t1}, 7")
    a(f"s_cselect_b32 s{s_t2}, s{s_t3}, s{s_t2}")
    a(f"s_lshl3_add_u32 s{s_t3}, s{s_t0}, s{s_t1}")
    a(f"s_sub_u32 s{s_t3}, s{s_t3}, 4")
    a(f"s_cmp_lt_u32 s{s_t0}, 4")
    a(f"s_cselect_b32 s{s_t1}, s{s_t2}, s{s_t3}")
    a(f"s_cmp_ge_u32 s{s_t1}, 63")
    a("s_cbranch_scc1 L_end")
    a(f"s_bfe_u32 s{s_px}, s2, 0x10003")
    a(f"s_bfe_u32 s{s_py}, s2, 0x10004")
    a(f"s_lshl2_add_u32 s{s_t1}, s{s_t1}, s{s_w}")
    a(f"s_mul_i32 s{s_band}, s{s_t1}, 4682")
    a(f"s_lshr_b32 s{s_band}, s{s_band}, 16")
    a(f"s_mul_i32 s{s_t0}, s{s_band}, 14")
    a(f"s_sub_u32 s{s_strip}, s{s_t1}, s{s_t0}")
    a(f"s_min_u32 s{s_t0}, s{s_band}, 8")
    a(f"s_mul_i32 s{s_m0}, s{s_band}, 12")
    a(f"s_add_u32 s{s_m0}, s{s_m0}, s{s_t0}")
    cm("x L2 prefetch: the 4 phase workgroups of a group each touch 7 of the 28 lines of a row segment")
    a(f"v_mul_u32_u24 v{vER}, 9363, v0")
    a(f"s_lshl1_add_u32 s{s_t0}, s{s_py}, s{s_px}")
    a(f"v_lshrrev_b32 v{vER}, 16, v{vER}")
    a(f"s_mul_i32 s{s_t0}, s{s_t0}, 7")
    a(f"v_mul_u32_u24 v{t5}, 7, v{vER}")
    a(f"s_mul_i32 s{s_t1}, s{s_strip}, 24")
    a(f"v_sub_u32 v{t5}, v0, v{t5}")
    a(f"s_add_u32 s{s_t0}, s{s_t0}, s{s_t1}")
    a(f"s_sub_u32 s{s_t0}, s{s_t0}, 2")
    a(f"v_add_u32 v{t5}, s{s_t0}, v{t5}")
    a(f"v_max_i32 v{t5}, 0, v{t5}")
    a(f"v_lshlrev_b32 v{vER+1}, 7, v{t5}")
    a(f"s_movk_i32 s{s_e0}, 223")
    a(f"s_mov_b32 s{s_e1}, {XROW}")
    def e_addr(k):
        a(f"s_add_i32 s{s_t1}, s{s_m0}, {EROWS[k][0]}")
        a(f"v_add_u32 v{t5}, s{s_t1}, v{vER}")
        a(f"v_med3_i32 v{t5}, v{t5}, 0, s{s_e0}")
        a(f"v_mad_u32_u24 v{vE+k}, v{t5}, s{s_e1}, v{vER+1}")
    e_addr(0)
    cm("weight L2 prefetch: 18 lines per wave")
    a(f"s_mul_i32 s{s_t0}, s{s_iw}, {18*128}")
    a(f"v_lshlrev_b32 v{t4}, 7, v0")
    a(f"v_add_u32 v{vD}, s{s_t0}, v{t4}")
    for s_, size in ((sX, XB), (sW, WB)):
        a(f"s_mov_b32 s{s_+2}, {size}")
        a(f"s_mov_b32 s{s_+3}, 0x20000")
    a("s_waitcnt lgkmcnt(0)")
    stamp(1); stamp(1, 3)
    for s_, p in ((sX, 4), (sW, 6)):
        a(f"s_mov_b32 s{s_}, s{p}")
        a(f"s_and_b32 s{s_+1}, s{p+1}, 0xffff")
    def touch(tag, nl, vaddr, srd):
        a(f"s_mov_b32 exec_lo, {hex((1 << min(nl, 32)) - 1)}")
        a(f"s_mov_b32 exec_hi, {hex((1 << max(nl - 32, 0)) - 1)}")
        e.vmem(tag, f"buffer_load_dword v{vPf}, v{vaddr}, s[{srd}:{srd+3}], 0 offen")
        a("s_mov_b64 exec, -1")
    touch("TE", 7*EROWS[0][1], vE, sX)
    touch("TD", 18, vD, sW)
    stamp(2, 3)

    cm("---- addresses of the LDS-DMA loads ----")
    for s_, p, size in ((sX2, 4, None), (sBs, 8, 192), (sO, 10, OB)):
        a(f"s_mov_b32 s{s_}, s{p}")
        a(f"s_and_b32 s{s_+1}, s{p+1}, 0xffff")
        if size: a(f"s_mov_b32 s{s_+2}, {size}")
        a(f"s_mov_b32 s{s_+3}, 0x20000")
    a(f"s_add_u32 s{s_iy}, s{s_m0}, s{s_py}")
    a(f"s_sub_u32 s{s_iy}, s{s_iy}, 1")
    a(f"s_mul_i32 s{s_xrow}, s{s_iy}, {XROW}")
    a(f"s_lshl4_add_u32 s{s_t0}, s{s_strip}, s{s_px}")
    a(f"s_sub_u32 s{s_t1}, s{s_t0}, 1")
    a(f"s_mulk_i32 s{s_t1}, 192")
    a(f"s_cmp_eq_u32 s{s_t0}, 0")
    a(f"s_cselect_b32 s{s_t2}, 12, 0")
    a(f"s_cmpk_gt_u32 s{s_t0}, 208")
    a(f"s_cselect_b32 s{s_t3}, 0, 12")
    a(f"s_mov_b32 s{s_mk}, 0")
    a(f"s_mov_b32 s{s_mk+1}, 0xffff0000")
    a(f"s_mov_b32 s{s_mk+2}, -1")
    a(f"s_mov_b32 s{s_mk+3}, 0")
    a(f"s_mov_b32 s{s_mk+4}, 0xffff0000")
    a(f"s_mov_b32 s{s_mk+5}, -1")
    a(f"v_lshlrev_b32 v{vWd}, 4, v0")
    a(f"v_xor_b32 v{t1}, 32, v{vWd}")
    a(f"v_add_u32 v{t1}, s{s_t1}, v{t1}")
    a(f"v_add_u32 v{vX+3}, s{s_t1}, v{vWd}")
    a(f"v_bfrev_b32 v{t3}, 1")
    a(f"v_cmp_gt_u32 vcc, s{s_t2}, v0")
    a(f"v_cndmask_b32 v{vX}, v{vX+3}, v{t1}, s[{s_mk}:{s_mk+1}]")
    a(f"v_cndmask_b32 v{vX+1}, v{vX+3}, v{t1}, s[{s_mk+2}:{s_mk+3}]")
    a(f"v_cndmask_b32 v{vX}, v{vX}, v{t3}, vcc")
    a(f"v_cmp_le_u32 vcc, s{s_t3}, v0")
    a(f"v_cndmask_b32 v{vX+2}, v{vX+3}, v{t1}, s[{s_mk+4}:{s_mk+5}]")
    a(f"v_lshrrev_b32 v{t2}, 5, v0")
    a(f"v_cndmask_b32 v{vX+3}, v{vX+3}, v{t3}, vcc")
    a(f"v_mul_u32_u24 v{t2}, 1536, v{t2}")
    a(f"v_add_u32 v{vWd+1}, v{vWd}, v{t2}")
    a(f"v_add_u32 v{vWd+2}, 1536, v{vWd}")
    a(f"s_lshr_b32 s{s_wh}, s{s_w}, 1")
    a(f"s_and_b32 s{s_o}, s{s_w}, 1")
    a(f"s_lshl2_add_u32 s{s_t0}, s{s_py}, s{s_px}")
    a(f"s_sub_u32 s{s_t0}, 5, s{s_t0}")
    a(f"s_mul_i32 s{s_pb}, s{s_t0}, 18432")
    a(f"s_mul_i32 s{s_t0}, s{s_o}, 1536")
    a(f"s_add_u32 s{s_pb}, s{s_pb}, s{s_t0}")
    a(f"s_mul_i32 s{s_t2}, s{s_o}, 3080")
    a(f"s_mul_i32 s{s_t3}, s{s_wh}, {CH}")
    a(f"s_add_u32 s{s_wmb}, s{s_t2}, s{s_t3}")
    a(f"s_mul_i32 s{s_xb}, s{s_w}, {NS*SLOT}")
    a(f"s_add_u32 s{s_xb}, s{s_xb}, {XBASE}")
    def wo_calc(j):
        c0, c1 = wconst(2*j), wconst(2*j+1)
        a(f"s_cmp_eq_u32 s{s_wh}, 0")
        a(f"s_mov_b32 s{s_t0}, {c1}")
        a(f"s_cselect_b32 s{s_t0}, {c0}, s{s_t0}")
        a(f"s_add_u32 s{s_wo+j}, s{s_t0}, s{s_pb}")
    a(f"v_lshrrev_b32 v{t2}, 4, v0")
    a(f"v_and_b32 v{t3}, 15, v0")
    a(f"v_lshlrev_b32 v{vBi}, 4, v{t2}")

    def xrow_dma(r):
        L = []
        chk = r in (0, 12, 13)
        srd = sX2 if chk else sX
        def pre():
            if chk:
                a(f"s_cmp_lt_u32 s{s_iy}, 224")
                a(f"s_cselect_b32 s{sX2+2}, {XB}, 0")
            a(f"s_add_u32 m0, s{s_xb}, {(r % NS)*SLOT}")
        L.append(pre)
        for k in range(4):
            def ld(k=k):
                off = f" offset:{1024*k}" if k else ""
                if k == 3: a("s_mov_b64 exec, 0xfff")
                e.vmem(f"X{r}", f"buffer_load_dwordx4 v{vX+k}, s[{srd}:{srd+3}], s{s_xrow} offen{off} lds")
                if k == 3:
                    a("s_mov_b64 exec, -1")
                    a(f"s_add_u32 s{s_xrow}, s{s_xrow}, {XROW}")
                    if r in (0, 11, 12) or True: a(f"s_add_u32 s{s_iy}, s{s_iy}, 1")
            L.append(ld)
        return L
    def w_dma(j):
        L = []
        def pre():
            wo_calc(j)
            a(f"s_add_u32 m0, s{s_wmb}, {2*j*CH}")
        L.append(pre)
        for k in range(3):
            def ld(k=k):
                off = f" offset:{1024*k}" if k else ""
                e.vmem(f"W{j}", f"buffer_load_dwordx4 v{vWd+k}, s[{sW}:{sW+3}], s{s_wo+j} offen{off} lds")
            L.append(ld)
        return L
    vbt = vAcc
    def bi_loads():
        L = [lambda: None]
        for p in range(3):
            L.append(lambda p=p: e.vmem("BI", f"buffer_load_dwordx4 {q4(vbt+4*p)}, v{vBi}, s[{sBs}:{sBs+3}], 0 offen offset:{64*p}"))
        return L
    def grp(name):
        k, n = name[0], name[1:]
        if k == "X": return xrow_dma(int(n))
        if k == "W": return w_dma(int(n))
        if k == "B": return bi_loads()
        if k == "E": return [lambda: None, lambda: touch("TE", 7*EROWS[int(n)][1], vE + int(n), sX)]
        raise ValueError(name)
    def run(L):
        for i, f in enumerate(L):
            f()
            if i == 0: a("s_nop 0")
    def f_reads(r):
        L = []
        for b in range(2):
            for ks in range(3):
                def rd(b=b, ks=ks):
                    e.lds(f"F{r}", f"ds_read_b128 {Ffrag(r, b, ks)}, v{vB+b} offset:{(r % NS)*SLOT + 64*ks}")
                L.append(rd)
        return L
    def part_B():
        cm("---- LDS read addresses, store addresses ----")
        for b in range(2):
            a(f"v_add_u32 v{t4}, {1-b}, v{t3}")
            a(f"v_mul_u32_u24 v{t5}, 192, v{t4}")
            a(f"v_add_u32 v{t5}, v{t5}, v{vBi}")
            a(f"v_lshlrev_b32 v{t4}, 3, v{t4}")
            a(f"v_and_b32 v{t4}, 32, v{t4}")
            a(f"v_xor_b32 v{t5}, v{t5}, v{t4}")
            a(f"v_add_u32 v{vB+b}, s{s_xb}, v{t5}")
        a(f"v_and_b32 v{t4}, 1, v{t2}")
        a(f"v_mul_u32_u24 v{t4}, 3080, v{t4}")
        a(f"v_lshrrev_b32 v{t5}, 1, v{t2}")
        a(f"v_mul_u32_u24 v{t5}, 1536, v{t5}")
        a(f"v_add_u32 v{t4}, v{t4}, v{t5}")
        a(f"v_lshrrev_b32 v{t5}, 2, v{t3}")
        a(f"v_mul_u32_u24 v{t5}, 192, v{t5}")
        a(f"v_add_u32 v{t4}, v{t4}, v{t5}")
        a(f"v_and_b32 v{t5}, 3, v{t3}")
        a(f"v_lshlrev_b32 v{t5}, 4, v{t5}")
        a(f"v_add_u32 v{vW}, v{t4}, v{t5}")
        a(f"v_add_u32 v{vW+1}, {6*CH}, v{vW}")
        e_addr(1)
        a(f"s_lshl1_add_u32 s{s_t0}, s{s_m0}, s{s_py}")
        a(f"s_mulk_i32 s{s_t0}, 448")
        a(f"s_lshl_b32 s{s_t1}, s{s_strip}, 5")
        a(f"s_add_u32 s{s_t0}, s{s_t0}, s{s_t1}")
        a(f"s_add_u32 s{s_t0}, s{s_t0}, s{s_px}")
        a(f"s_mul_i32 s{s_o01}, s{s_t0}, 192")
        for k in range(1, NDT): a(f"s_add_u32 s{s_o01+k}, s{s_o01+k-1}, {OROW2}")
        a(f"s_add_u32 s{s_or+1}, s{s_o01}, {OROW2}")
        a(f"s_cmp_lt_u32 s{s_band}, 8")
        a(f"s_cselect_b32 s{s_R}, 13, 12")
        a(f"s_mul_i32 s{s_t0}, s{s_w}, {3*NDT*1024}")
        a(f"v_lshrrev_b32 v{t4}, 1, v{t3}")
        a(f"v_and_b32 v{t4}, 3, v{t4}")
        a(f"v_xor_b32 v{t4}, v{t4}, v{t2}")
        a(f"v_lshlrev_b32 v{t4}, 4, v{t4}")
        a(f"v_lshlrev_b32 v{t5}, 6, v{t3}")
        a(f"v_add3_u32 v{vTw}, v{t4}, v{t5}, s{s_t0}")
        a(f"v_lshrrev_b32 v{t1}, 2, v0")
        a(f"v_and_b32 v{t4}, 3, v0")
        a(f"v_mul_u32_u24 v{t5}, 384, v{t1}")
        a(f"v_lshl_add_u32 v{vO2}, v{t4}, 4, v{t5}")
        a(f"v_bfe_u32 v{t5}, v{t1}, 1, 2")
        a(f"v_xor_b32 v{t4}, v{t4}, v{t5}")
        a(f"v_lshlrev_b32 v{t4}, 4, v{t4}")
        a(f"v_lshlrev_b32 v{t5}, 6, v{t1}")
        a(f"v_add3_u32 v{vTr}, v{t4}, v{t5}, s{s_t0}")
        a(f"v_mul_u32_u24 v{t4}, 384, v{t3}")
        a(f"v_add_u32 v{vO}, v{t4}, v{vBi}")
        if opt.get("xp192"):
            for i in range(3):
                a(f"v_add_u32 v{t4}, {64*i}, v0")
                a(f"v_mul_u32_u24 v{t5}, 5462, v{t4}")
                a(f"v_lshrrev_b32 v{t5}, 16, v{t5}")
                a(f"v_mul_u32_u24 v{t1}, 12, v{t5}")
                a(f"v_sub_u32 v{t1}, v{t4}, v{t1}")
                a(f"v_mul_u32_u24 v{t5}, 384, v{t5}")
                a(f"v_lshlrev_b32 v{t1}, 4, v{t1}")
                a(f"v_add_u32 v{vP+i}, v{t5}, v{t1}")
    pre = str(opt.get("pre", "B,W0,X0,X1|W1,W2,X2,W3")).split("|")
    preA = pre[0].split(","); preB = pre[1].split(",") if len(pre) > 1 and pre[1] else []
    BF = opt.get("bfirst", 1)
    if BF: part_B()
    cm("---- first loads ----")
    for g_ in preA: run(grp(g_))
    stamp(3, 3)
    if not BF: part_B()
    for g_ in preB: run(grp(g_))
    stamp(4, 3)
    e.wait_vm("BI")
    stamp(5, 3)
    cm("bias -> fp32 accumulator initial values")
    for p in range(3):
        for h in range(2):
            for r in range(4):
                src = vbt + 4*p + (4*h+r)//2
                dst = vBias + 4*(2*p+h) + r
                if r & 1: a(f"v_and_b32 v{dst}, 0xffff0000, v{src}")
                else: a(f"v_lshlrev_b32 v{dst}, 16, v{src}")
    e.wait_vm("X0")
    for f in f_reads(0): f()
    e.wait_vm("X1")
    stamp(6, 3)
    for f in f_reads(1): f()

    cm("---- first pass: output rows 0 and 1, weights stream LDS -> registers ----")
    free = list(range(NQ))
    def take(): return vAcc + 4*free.pop(0)
    def give(r): free.append((r - vAcc)//4)
    acc = [[take() for t in range(6)] for tile in range(2)]
    LAG = opt.get("lag", 5)
    def rd_half(f, half):
        q, t = divmod(f, 6); p, h = divmod(t, 2)
        off = (q % 6)*CH + half*768 + 64*p + 8*h
        e.lds(f"R{f}", f"ds_read_b64_tr_b16 {whalf(f, half)}, v{vW + q//6} offset:{off}")
    def mf(d, f, bfr, c):
        a(f"v_mfma_f32_16x16x32_bf16 {q4(d)}, {wfrag(f)}, {bfr}, {q4(c)}")
    ex = {}
    def atg(G, f): ex.setdefault(G, []).append(f)
    for item in str(opt.get("inp", "W4@0,W5@3,X3@6,X4@10,E1@14")).split(","):
        if not item: continue
        name, pos = item.split("@"); pos = int(pos)
        L = grp(name)
        atg(2*pos, L[0])
        step = opt.get("pace", 1)
        for k, f in enumerate(L[1:]): atg(2*(pos + k*step) + 1, f)
    f2 = opt.get("f2pos", 29)
    atg(2*f2, lambda: e.wait_vm("X2"))
    for i, f in enumerate(f_reads(2)): atg(2*(f2+1+i) + 1, f)
    f3 = opt.get("f3pos", 60)
    atg(2*f3, lambda: e.wait_vm("X3"))
    for i, f in enumerate(f_reads(3)): atg(2*(f3+1+i) + 1, f)
    def stage_gate(n):
        if n < 72 and n % 12 == 0:
            e.wait_vm(f"W{n//12}")
            a("s_barrier")
            if n == 0: stamp(3); stamp(7, 3)
            stamp(1 + n//12, 2); stamp(n//12, 7)
    if opt.get("dsleep") and opt.get("dstile", 2) == 0:
        a("s_bitcmp1_b32 s2, %d" % opt.get("dsbit", 2))
        a("s_cbranch_scc%d L_nosleep" % (1 if opt.get("dsinv") else 0))
        a("s_sleep %d" % opt["dsleep"])
        e.lab("L_nosleep")
    for n in range(LAG):
        stage_gate(n)
        rd_half(n, 0); rd_half(n, 1)
    for m in range(72):
        n = m + LAG
        q, t = divmod(m, 6); aa, b, ks = qabk(q)
        if m == 0: e.wait_lg("F1")
        if m == 36: e.wait_lg("F2")
        e.wait_lg(f"R{m}")
        if m == 0: stamp(4)
        for tile in range(2):
            row = tile + (1 - aa)
            c = (vBias + 4*t) if q == 0 else acc[tile][t]
            mf(acc[tile][t], m, Ffrag(row, b, ks), c)
            if tile == 0: stage_gate(n)
            if n < 72: rd_half(n, tile)
            for f in ex.get(2*m + tile, []): f()
    assert 3*NDT*4096 <= 55000
    stamp(5); stamp(7, 2); stamp(6, 7); cstamp(0)

    pkfree = [vPk + 4*i for i in range(NPK)]
    rbfree = [vRb + 4*i for i in range(NRB)]
    def epi_ops(accq, p, tile):
        A, B = accq
        lt = tile < NDT
        box = {}
        cv = (lambda t: None) if opt.get("nocvt") else a
        def c0():
            box["pk"] = pkfree.pop(0)
            cv(f"v_cvt_pk_bf16_f32 v{box['pk']}, v{A}, v{A+1}")
        def c1(): cv(f"v_cvt_pk_bf16_f32 v{box['pk']+1}, v{A+2}, v{A+3}"); give(A)
        def c2(): cv(f"v_cvt_pk_bf16_f32 v{box['pk']+2}, v{B}, v{B+1}")
        def c3(): cv(f"v_cvt_pk_bf16_f32 v{box['pk']+3}, v{B+2}, v{B+3}"); give(B)
        off = f" offset:{64*p}" if p else ""
        fl = (" " + stf) if stf else ""
        slot = 3*tile + p
        def wr():
            e.lds(f"T{slot}w", f"ds_write_b128 v{vTw}, {q4(box['pk'])} offset:{slot*1024}")
            pkfree.append(box["pk"])
        def rd():
            box["rb"] = rbfree.pop(0)
            e.lds(f"T{slot}r", f"ds_read_b128 {q4(box['rb'])}, v{vTr} offset:{slot*1024}")
        def wt(): e.wait_lg(f"T{slot}r")
        def st():
            src = box["rb"] if lt else box["pk"]
            so = (s_o01 + tile) if tile < NDT else (s_or + tile % 4)
            if opt.get("xp192"):
                e.vmem("ST", f"buffer_store_dwordx4 {q4(src)}, v{vP+p}, s[{sO}:{sO+3}], s{so} offen{fl}")
            elif opt.get("cdata"):
                e.vmem("ST", f"buffer_store_dwordx4 {q4(vBias)}, v{vO2 if lt else vO}, s[{sO}:{sO+3}], s{so} offen{off}{fl}")
            elif not opt.get("nost"):
                e.vmem("ST", f"buffer_store_dwordx4 {q4(src)}, v{vO2 if lt else vO}, s[{sO}:{sO+3}], s{so} offen{off}{fl}")
            (rbfree if lt else pkfree).append(src)
        if lt: return [c0, c1], [c2, c3], [wr, rd, wt, st]
        return [c0, c1], [c2, c3], [st]
    SPREAD = ints(opt.get("spread", {2: "2,3,4,5,6,7", 3: "3,4,5,6,7,8,9,10,11", 4: "4,4,5,6,6,7,8,8,9,10,10,11"}[NDT]))
    deferred = {}
    def defer(k, fin, minpos=None):
        tl_ = SPREAD[k]
        nth = len([1 for kk in range(k) if SPREAD[kk] == tl_])
        p0 = ints(opt.get("defpos", "40,16,64"))[nth]
        if minpos is not None: p0 = max(p0, minpos)
        deferred.setdefault(tl_, []).extend([(p0, fin[1]), (p0 + 6, fin[2]), (p0 + 7, fin[3])])
    carry = []
    for tile in range(2):
        for p in range(3):
            c01, c23, fin = epi_ops((acc[tile][2*p], acc[tile][2*p+1]), p, tile)
            carry.append((c01 + c23, fin))
    def steady(i, carry_sched, force=None, record=None):
        cm(f"---- output row {i} ----")
        ex = {}
        def put(n, f): ex.setdefault(n, []).append(f)
        for n, L in carry_sched.items():
            for f in L: put(n, f)
        for n, f in deferred.get(i, []): put(n, f)
        put(1, lambda: a(f"s_add_u32 s{s_or + i % 4}, s{s_or + (i-1) % 4}, {OROW2}"))
        if i == 2: put(4, lambda: e.wait_lg("F3"))
        if i == opt.get("tewt", -1): put(opt.get("tewpos", 0), lambda: e.wait_vm("TE"))
        r = i + 2
        if i + 3 <= 13 and not opt.get("nodma"):
            L = xrow_dma(i + 3)
            dp = ints(opt.get("dma2", "50,55,60,65")) if i == 2 else ints(opt.get("dmapos", "2,4,26,28"))
            put(dp[0] - 1, L[0])
            for k in range(4): put(dp[k], L[1+k])
        if r <= 13:
            if not opt.get("nodma") or r < 5: put(opt.get("xwpos", 40), lambda: e.wait_vm(f"X{r}"))
            rp = ints(opt.get("rdpos", "41,42,43,50,51,52"))
            for k, f in enumerate(f_reads(r)): put(rp[k], f)
            put(66, lambda: e.wait_lg(f"F{r}"))
        accs = []
        nxt = {}
        for t in range(6):
            if force is None: d = take()
            else:
                d = force[t]; free.remove((d - vAcc)//4)
            accs.append(d)
            if record is not None: record.append(d)
            for q in range(12):
                n = 12*t + q
                aa, b, ks = qabk(q)
                row = i + (1 - aa)
                c = (vBias + 4*t) if q == 0 else d
                if PM == 6 and i == opt.get("ptile", 2) and q == 0: stamp(t, 6)
                if PM == 6 and i == opt.get("ptile", 2) + 1 and n == 0: stamp(6, 6)
                if PM == 6 and i == opt.get("ptile", 2) + 1 and n == 36: stamp(7, 6)
                mf(d, q*6 + t, Ffrag(row, b, ks), c)
                for f in ex.get(n, []): f()
            if t % 2 == 1:
                p = t//2
                c01, c23, fin = epi_ops((accs[t-1], accs[t]), p, i)
                base = 12*t + 12
                so_ = ints(opt.get("stoff", "10,10,10"))[p] if i >= NDT else 10
                tgt = [(base + 0, c01[0]), (base + 1, c01[1]), (base + 8, c23[0]), (base + 9, c23[1]), (base + so_, fin[0])]
                if i < NDT and force is None:
                    assert SPREAD[3*i + p] > i
                    defer(3*i + p, fin)
                for n_, f in tgt:
                    if n_ < 72: put(n_, f)
                    else: nxt.setdefault(n_ - 72, []).append(f)
        return nxt
    cs = {}
    cstep = opt.get("cstep", 6)
    for k, (cv_, fin) in enumerate(carry):
        b0 = cstep*k
        for j, f in enumerate(cv_): cs.setdefault(b0 + j, []).append(f)
        cs.setdefault(b0 + 4, []).append(fin[0])
        defer(k, fin, b0 + 6 if SPREAD[k] == 2 else None)
    def tail(em_carry):
        cm("---- last quarter of the last row ----")
        a("s_nop 7")
        for n in sorted(em_carry):
            for f in em_carry[n]: f()
    def prof_dump(em):
        if not T0: return
        b = em.a
        b("s_waitcnt vmcnt(0)")
        if PM == 1: b(f"s_memrealtime s[{70+14}:{71+14}]")
        b("s_waitcnt lgkmcnt(0)")
        b("s_load_dwordx2 s[4:5], s[0:1], 40")
        b("s_waitcnt lgkmcnt(0)")
        b("s_mov_b32 s8, s4"); b("s_and_b32 s9, s5, 0xffff"); b("s_mov_b32 s10, 0x10000000"); b("s_mov_b32 s11, 0x20000")
        b("v_mov_b32 v1, 0")
        for i in range(8): b(f"v_writelane_b32 v1, s{70+2*i}, {i}")
        b(f"v_writelane_b32 v1, s{s_R}, 14")
        b("s_sub_u32 s86, s88, s86")
        b(f"v_writelane_b32 v1, s86, 13")
        b("s_getreg_b32 s87, hwreg(HW_REG_XCC_ID)")
        b(f"v_writelane_b32 v1, s87, 12")
        b(f"s_lshl_b32 s6, s2, 2"); b(f"s_add_u32 s6, s6, s{s_w}"); b("s_lshl_b32 s6, s6, 6")
        b("v_lshlrev_b32 v3, 2, v0")
        b("v_cmp_gt_u32 vcc, 16, v0")
        b("s_and_saveexec_b64 s[12:13], vcc")
        b("buffer_store_dword v1, v3, s[8:11], s6 offen")
        b("s_waitcnt vmcnt(0)")
    nxt = cs
    saved = None
    STAG = opt.get("stag", 1)
    tl = ints(opt.get("tl", "2,3,4,5,6,8,10"))
    for i in range(2, 13):
        if i == 12:
            a(f"s_cmp_eq_u32 s{s_R}, 12")
            a("s_cbranch_scc1 L_tail12")
            saved = (e.clone(), dict(nxt), list(pkfree), list(rbfree))
        if opt.get("dvar") and i == opt.get("dstile", 2):
            mode = opt["dvar"]
            if mode == "x8": a("s_and_b32 s90, s2, 7")
            elif mode == "x8r":
                a("s_and_b32 s90, s2, 7"); a("s_sub_u32 s90, 7, s90")
            elif mode == "ph": a("s_bfe_u32 s90, s2, 0x20003")
            elif mode == "w": a(f"s_mov_b32 s90, s{s_w}")
            elif mode == "xw":
                a("s_and_b32 s90, s2, 1"); a("s_lshl_b32 s90, s90, 2"); a(f"s_add_u32 s90, s90, s{s_w}")
            elif mode == "g8": a("s_lshr_b32 s90, s2, 5")
            elif mode == "k4":
                a("s_and_b32 s90, s2, 1"); a("s_xor_b32 s90, s90, 1"); a("s_lshl_b32 s90, s90, 1")
                a("s_bfe_u32 s91, s2, 0x10005"); a("s_add_u32 s90, s90, s91")
            elif mode == "g4":
                a("s_bfe_u32 s90, s2, 0x20005")
            elif mode == "g2":
                a("s_bfe_u32 s90, s2, 0x10005")
            elif mode == "p4":
                a("s_bfe_u32 s90, s2, 0x20003")
            e.lab("L_dv")
            a("s_cmp_eq_u32 s90, 0")
            a("s_cbranch_scc1 L_dvdone")
            a("s_sleep %d" % opt.get("dunit", 1))
            a("s_sub_u32 s90, s90, 1")
            a("s_branch L_dv")
            e.lab("L_dvdone")
        if opt.get("dsleep") and i == opt.get("dstile", 2):
            a("s_bitcmp1_b32 s2, %d" % opt.get("dsbit", 2))
            a("s_cbranch_scc%d L_nosleep" % (1 if opt.get("dsinv") else 0))
            a("s_sleep %d" % opt["dsleep"])
            e.lab("L_nosleep")
        if i in tl: stamp(1 + tl.index(i), 5)
        if i == 3: stamp(7, 7)
        if i == 2 and STAG:
            cm("workgroups with an even id convert the first two rows before row 2 instead of inside it: this")
            cm("de-synchronises the write bursts of neighbouring dies")
            a("s_bitcmp1_b32 s2, 0")
            a("s_cbranch_scc0 L_row2_even")
            st2 = (e.clone(), list(free), list(pkfree), list(rbfree), dict(nxt))
            rec2 = []
            nxt = steady(i, nxt, record=rec2)
            e.lab("L_row3")
        else:
            nxt = steady(i, nxt)
    stamp(6); cstamp(1)
    tail(nxt)
    prof_dump(e)
    a("s_endpgm")
    em0, nx0, pk0, rb0 = saved
    L_main = e.L
    e.L = []; e.vm = em0.vm; e.lg = em0.lg; e.vm_done = em0.vm_done; e.lg_done = em0.lg_done
    pkfree[:] = pk0; rbfree[:] = rb0
    e.lab("L_tail12")
    stamp(6); cstamp(1)
    tail(nx0)
    prof_dump(e)
    e.lab("L_end")
    a("s_endpgm")
    if STAG:
        emB, frB, pkB, rbB, csB = st2
        e.vm = emB.vm; e.lg = emB.lg; e.vm_done = emB.vm_done; e.lg_done = emB.lg_done
        free[:] = frB; pkfree[:] = pkB; rbfree[:] = rbB
        e.lab("L_row2_even")
        for n in sorted(csB):
            for f in csB[n]: f()
        steady(2, {}, force=rec2)
        a("s_branch L_row3")
    e.lab("L_codeend")
    body = "\n".join(L_main + e.L)
    hdr = f"""; ConvTranspose2d(k=4, stride 2, pad 1), NHWC bf16: x[224][224][96], w[4][4][96][96], b[96] -> out[448][448][96]
; out[2m+py][2n+px] = b + sum over a,b in {{0,1}} of x[m+py-a][n+px-b] . w[1-py+2a][1-px+2b]   (4 phases, K = 4*96)
; One workgroup = one phase (py,px); the 4 taps (96x96 each) live in registers (288 per lane) as MFMA A operands.
; @launch grid=(256,1,1) block=(256,1,1) lds={LDS}
.amdgcn_target "amdgcn-amd-amdhsa--gfx950"
.text
.globl {KNAME}
.p2align 8
.type {KNAME},@function
{KNAME}:
{body}
.section .rodata,"a"
.p2align 6
.amdhsa_kernel {KNAME}
  .amdhsa_next_free_vgpr 512
  .amdhsa_next_free_sgpr 100
  .amdhsa_accum_offset 256
  .amdhsa_group_segment_fixed_size 0
  .amdhsa_kernarg_size 48
  .amdhsa_user_sgpr_count 2
  .amdhsa_user_sgpr_kernarg_segment_ptr 1
  .amdhsa_system_sgpr_workgroup_id_x 1
.end_amdhsa_kernel
"""
    return hdr

if __name__ == "__main__":
    import mk
    out = sys.argv[1] if len(sys.argv) > 1 else "final.s"
    opt = {}
    for x in sys.argv[2:]:
        k, v = x.split("=")
        opt[k] = int(v) if v.lstrip("-").isdigit() else v
    open(out, "w").write(gen(opt))
    print(mk.build(out))
```

```python
import sys
KNAME = "standalone__transposed_strided__vision_kernel"
XB = 9633792; WB = 294912; OB = 38535168
XROW = 224*192
OROW2 = 2*448*192
CH = 6160
XBASE = 73984
NS = 5
SLOT = 4096
LDS = XBASE + 4*NS*SLOT

class Em:
    def __init__(s):
        s.L = []; s.vm = []; s.lg = []; s.vm_done = 0; s.lg_done = 0
    def clone(s):
        e = Em(); e.vm = list(s.vm); e.lg = list(s.lg); e.vm_done = s.vm_done; e.lg_done = s.lg_done
        return e
    def a(s, t): s.L.append("    " + t)
    def c(s, t): s.L.append("    ; " + t)
    def lab(s, t): s.L.append(t + ":")
    def vmem(s, tag, t): s.a(t); s.vm.append(tag)
    def lds(s, tag, t): s.a(t); s.lg.append(tag)
    def wait_vm(s, tag):
        idx = max(i for i, x in enumerate(s.vm) if x == tag) + 1
        if idx <= s.vm_done: return
        n = len(s.vm) - idx
        assert n <= 63
        s.a(f"s_waitcnt vmcnt({n})"); s.vm_done = idx
    def wait_lg(s, tag):
        idx = max(i for i, x in enumerate(s.lg) if x == tag) + 1
        if idx <= s.lg_done: return
        n = len(s.lg) - idx
        assert n <= 15, (n, tag)
        s.a(f"s_waitcnt lgkmcnt({n})"); s.lg_done = idx

def ints(x): return [int(v) for v in str(x).split(",")]

def gen(opt):
    stf = opt.get("stflags", "sc1")
    T0 = opt.get("prof", False)
    PM = opt.get("pm", 1)
    NDT = opt.get("ndt", 3)
    e = Em(); a = e.a; cm = e.c
    V = 0
    def alloc(n, al=1):
        nonlocal V
        V = (V + al - 1)//al*al
        r = V; V += n; return r
    v_tid = alloc(1)
    vT = alloc(5)
    vPf = alloc(1)
    vX = alloc(4)
    vWd = alloc(3)
    vB = alloc(2)
    vW = alloc(2)
    vO = alloc(1)
    vBi = alloc(1)
    vO2 = alloc(1)
    vD = alloc(1)
    vE = alloc(2)
    vER = alloc(2)
    vP = alloc(3)
    vTw = alloc(1, 2); vTr = alloc(1)
    vF = [alloc(24, 4) for _ in range(3)]
    NQ = 14
    vAcc = alloc(4*NQ, 4)
    vBias = alloc(24, 4)
    NPK = 4
    vPk = alloc(4*NPK, 4)
    NRB = 3
    vRb = alloc(4*NRB, 4)
    vWv = alloc(32, 4)
    assert V <= 256, V
    def wfrag(f):
        return (f"a[{4*f}:{4*f+3}]" if f < 64 else f"v[{vWv+4*(f-64)}:{vWv+4*(f-64)+3}]")
    def whalf(f, h):
        if f < 64: return f"a[{4*f+2*h}:{4*f+2*h+1}]"
        r = vWv+4*(f-64)+2*h
        return f"v[{r}:{r+1}]"
    def Ffrag(row, b, ks):
        r = vF[row % 3] + 4*(b*3+ks)
        return f"v[{r}:{r+3}]"
    def q4(r): return f"v[{r}:{r+3}]"
    sX, sX2, sW, sBs, sO = 12, 16, 20, 24, 28
    s_w, s_wh, s_o, s_px, s_py, s_strip, s_band, s_m0, s_R = 32, 33, 34, 35, 36, 37, 38, 39, 40
    s_t0, s_t1, s_t2, s_t3 = 41, 42, 43, 44
    s_xrow, s_iy, s_xb, s_pb, s_wmb = 45, 46, 47, 48, 49
    s_wo = 50
    s_or = 56
    s_mk = 60
    s_pc = 66
    s_o01 = 92
    s_e0, s_e1, s_iw = 96, 97, 98
    def stamp(i, pm=1):
        if T0 and pm == PM: a(f"s_mem{'time' if pm >= 6 else 'realtime'} s[{70+2*i}:{71+2*i}]")
    def cstamp(i):
        if T0: a(f"s_memtime s[{86+2*i}:{87+2*i}]")
    def qabk(q):
        aa = 1 - q//6; b = (q % 6)//3; ks = q % 3
        return aa, b, ks
    def wconst(q):
        aa, b, ks = qabk(q)
        return (8*aa + 2*b)*18432 + ks*6144
    t1, t2, t3, t4, t5 = [vT+i for i in range(5)]
    EROWS = [tuple(int(v) for v in x.split(":")) for x in str(opt.get("erows", "-1:4,5:9")).split(",")]

    cm("---- decode workgroup / wave, start the L2 prefetches as early as possible ----")
    for pm in (1, 2, 3, 5): stamp(0, pm)
    a("s_cmp_ge_u32 s2, 256")
    a("s_cbranch_scc1 L_end")
    a("s_load_dwordx4 s[4:7], s[0:1], 0")
    a("s_load_dwordx4 s[8:11], s[0:1], 16")
    a(f"v_lshrrev_b32 v{t4}, 6, v0")
    a(f"s_getpc_b64 s[{s_pc}:{s_pc+1}]")
    e.lab("L_pc")
    a(f"v_readfirstlane_b32 s{s_w}, v{t4}")
    a(f"v_and_b32 v0, 63, v0")
    assert vTw % 2 == 0 and vTr == vTw + 1
    a(f"s_lshr_b32 s{s_iw}, s2, 3")
    a(f"s_lshl2_add_u32 s{s_iw}, s{s_iw}, s{s_w}")
    cm("each wave pulls two 128-byte lines of this kernel's code into L2")
    a(f"s_lshl_b32 s{s_t0}, s{s_iw}, 7")
    a(f"v_lshrrev_b32 v{t1}, 5, v0")
    a(f"v_lshlrev_b32 v{t1}, 14, v{t1}")
    a(f"v_add_u32 v{t1}, s{s_t0}, v{t1}")
    a(f"v_min_u32 v{t1}, L_codeend-L_pc-4, v{t1}")
    a(f"v_mov_b32 v{vTw+1}, s{s_pc+1}")
    a(f"v_add_co_u32 v{vTw}, vcc, s{s_pc}, v{t1}")
    LUT = opt.get("slotlut", "0x37652104")
    if LUT != "none":
        a(f"s_and_b32 s{s_t0}, s2, 7")
        a(f"s_lshl_b32 s{s_t0}, s{s_t0}, 2")
        a(f"s_or_b32 s{s_t0}, s{s_t0}, 0x30000")
        a(f"s_bfe_u32 s{s_t0}, {LUT}, s{s_t0}")
    else:
        a(f"s_and_b32 s{s_t0}, s2, 7")
    a(f"s_lshr_b32 s{s_t1}, s2, 5")
    a(f"v_addc_co_u32 v{vTw+1}, vcc, 0, v{vTw+1}, vcc")
    e.vmem("PF", f"global_load_dword v{vPf}, v[{vTw}:{vTw+1}], off")
    cm("unit group c: 13-row groups (c < 28) on slots 0..3: c = 7*slot + grp (grp < 7), c = 60 + slot (grp == 7);")
    cm("slots 4..7: c = 28 + 8*(slot-4) + grp.  c == 63 has no work.")
    a(f"s_mul_i32 s{s_t2}, s{s_t0}, 7")
    a(f"s_add_u32 s{s_t2}, s{s_t2}, s{s_t1}")
    a(f"s_add_u32 s{s_t3}, s{s_t0}, 60")
    a(f"s_cmp_eq_u32 s{s_t1}, 7")
    a(f"s_cselect_b32 s{s_t2}, s{s_t3}, s{s_t2}")
    a(f"s_lshl3_add_u32 s{s_t3}, s{s_t0}, s{s_t1}")
    a(f"s_sub_u32 s{s_t3}, s{s_t3}, 4")
    a(f"s_cmp_lt_u32 s{s_t0}, 4")
    a(f"s_cselect_b32 s{s_t1}, s{s_t2}, s{s_t3}")
    a(f"s_cmp_ge_u32 s{s_t1}, 63")
    a("s_cbranch_scc1 L_end")
    a(f"s_bfe_u32 s{s_px}, s2, 0x10003")
    a(f"s_bfe_u32 s{s_py}, s2, 0x10004")
    a(f"s_lshl2_add_u32 s{s_t1}, s{s_t1}, s{s_w}")
    a(f"s_mul_i32 s{s_band}, s{s_t1}, 4682")
    a(f"s_lshr_b32 s{s_band}, s{s_band}, 16")
    a(f"s_mul_i32 s{s_t0}, s{s_band}, 14")
    a(f"s_sub_u32 s{s_strip}, s{s_t1}, s{s_t0}")
    a(f"s_min_u32 s{s_t0}, s{s_band}, 8")
    a(f"s_mul_i32 s{s_m0}, s{s_band}, 12")
    a(f"s_add_u32 s{s_m0}, s{s_m0}, s{s_t0}")
    cm("x L2 prefetch: the 4 phase workgroups of a group each touch 7 of the 28 lines of a row segment")
    a(f"v_mul_u32_u24 v{vER}, 9363, v0")
    a(f"s_lshl1_add_u32 s{s_t0}, s{s_py}, s{s_px}")
    a(f"v_lshrrev_b32 v{vER}, 16, v{vER}")
    a(f"s_mul_i32 s{s_t0}, s{s_t0}, 7")
    a(f"v_mul_u32_u24 v{t5}, 7, v{vER}")
    a(f"s_mul_i32 s{s_t1}, s{s_strip}, 24")
    a(f"v_sub_u32 v{t5}, v0, v{t5}")
    a(f"s_add_u32 s{s_t0}, s{s_t0}, s{s_t1}")
    a(f"s_sub_u32 s{s_t0}, s{s_t0}, 2")
    a(f"v_add_u32 v{t5}, s{s_t0}, v{t5}")
    a(f"v_max_i32 v{t5}, 0, v{t5}")
    a(f"v_lshlrev_b32 v{vER+1}, 7, v{t5}")
    a(f"s_movk_i32 s{s_e0}, 223")
    a(f"s_mov_b32 s{s_e1}, {XROW}")
    def e_addr(k):
        a(f"s_add_i32 s{s_t1}, s{s_m0}, {EROWS[k][0]}")
        a(f"v_add_u32 v{t5}, s{s_t1}, v{vER}")
        a(f"v_med3_i32 v{t5}, v{t5}, 0, s{s_e0}")
        a(f"v_mad_u32_u24 v{vE+k}, v{t5}, s{s_e1}, v{vER+1}")
    e_addr(0)
    cm("weight L2 prefetch: 18 lines per wave")
    a(f"s_mul_i32 s{s_t0}, s{s_iw}, {18*128}")
    a(f"v_lshlrev_b32 v{t4}, 7, v0")
    a(f"v_add_u32 v{vD}, s{s_t0}, v{t4}")
    for s_, size in ((sX, XB), (sW, WB)):
        a(f"s_mov_b32 s{s_+2}, {size}")
        a(f"s_mov_b32 s{s_+3}, 0x20000")
    a("s_waitcnt lgkmcnt(0)")
    stamp(1); stamp(1, 3)
    for s_, p in ((sX, 4), (sW, 6)):
        a(f"s_mov_b32 s{s_}, s{p}")
        a(f"s_and_b32 s{s_+1}, s{p+1}, 0xffff")
    def touch(tag, nl, vaddr, srd):
        a(f"s_mov_b32 exec_lo, {hex((1 << min(nl, 32)) - 1)}")
        a(f"s_mov_b32 exec_hi, {hex((1 << max(nl - 32, 0)) - 1)}")
        e.vmem(tag, f"buffer_load_dword v{vPf}, v{vaddr}, s[{srd}:{srd+3}], 0 offen")
        a("s_mov_b64 exec, -1")
    touch("TE", 7*EROWS[0][1], vE, sX)
    touch("TD", 18, vD, sW)
    stamp(2, 3)

    cm("---- addresses of the LDS-DMA loads ----")
    for s_, p, size in ((sX2, 4, None), (sBs, 8, 192), (sO, 10, OB)):
        a(f"s_mov_b32 s{s_}, s{p}")
        a(f"s_and_b32 s{s_+1}, s{p+1}, 0xffff")
        if size: a(f"s_mov_b32 s{s_+2}, {size}")
        a(f"s_mov_b32 s{s_+3}, 0x20000")
    a(f"s_add_u32 s{s_iy}, s{s_m0}, s{s_py}")
    a(f"s_sub_u32 s{s_iy}, s{s_iy}, 1")
    a(f"s_mul_i32 s{s_xrow}, s{s_iy}, {XROW}")
    a(f"s_lshl4_add_u32 s{s_t0}, s{s_strip}, s{s_px}")
    a(f"s_sub_u32 s{s_t1}, s{s_t0}, 1")
    a(f"s_mulk_i32 s{s_t1}, 192")
    a(f"s_cmp_eq_u32 s{s_t0}, 0")
    a(f"s_cselect_b32 s{s_t2}, 12, 0")
    a(f"s_cmpk_gt_u32 s{s_t0}, 208")
    a(f"s_cselect_b32 s{s_t3}, 0, 12")
    a(f"s_mov_b32 s{s_mk}, 0")
    a(f"s_mov_b32 s{s_mk+1}, 0xffff0000")
    a(f"s_mov_b32 s{s_mk+2}, -1")
    a(f"s_mov_b32 s{s_mk+3}, 0")
    a(f"s_mov_b32 s{s_mk+4}, 0xffff0000")
    a(f"s_mov_b32 s{s_mk+5}, -1")
    a(f"v_lshlrev_b32 v{vWd}, 4, v0")
    a(f"v_xor_b32 v{t1}, 32, v{vWd}")
    a(f"v_add_u32 v{t1}, s{s_t1}, v{t1}")
    a(f"v_add_u32 v{vX+3}, s{s_t1}, v{vWd}")
    a(f"v_bfrev_b32 v{t3}, 1")
    a(f"v_cmp_gt_u32 vcc, s{s_t2}, v0")
    a(f"v_cndmask_b32 v{vX}, v{vX+3}, v{t1}, s[{s_mk}:{s_mk+1}]")
    a(f"v_cndmask_b32 v{vX+1}, v{vX+3}, v{t1}, s[{s_mk+2}:{s_mk+3}]")
    a(f"v_cndmask_b32 v{vX}, v{vX}, v{t3}, vcc")
    a(f"v_cmp_le_u32 vcc, s{s_t3}, v0")
    a(f"v_cndmask_b32 v{vX+2}, v{vX+3}, v{t1}, s[{s_mk+4}:{s_mk+5}]")
    a(f"v_lshrrev_b32 v{t2}, 5, v0")
    a(f"v_cndmask_b32 v{vX+3}, v{vX+3}, v{t3}, vcc")
    a(f"v_mul_u32_u24 v{t2}, 1536, v{t2}")
    a(f"v_add_u32 v{vWd+1}, v{vWd}, v{t2}")
    a(f"v_add_u32 v{vWd+2}, 1536, v{vWd}")
    a(f"s_lshr_b32 s{s_wh}, s{s_w}, 1")
    a(f"s_and_b32 s{s_o}, s{s_w}, 1")
    a(f"s_lshl2_add_u32 s{s_t0}, s{s_py}, s{s_px}")
    a(f"s_sub_u32 s{s_t0}, 5, s{s_t0}")
    a(f"s_mul_i32 s{s_pb}, s{s_t0}, 18432")
    a(f"s_mul_i32 s{s_t0}, s{s_o}, 1536")
    a(f"s_add_u32 s{s_pb}, s{s_pb}, s{s_t0}")
    a(f"s_mul_i32 s{s_t2}, s{s_o}, 3080")
    a(f"s_mul_i32 s{s_t3}, s{s_wh}, {CH}")
    a(f"s_add_u32 s{s_wmb}, s{s_t2}, s{s_t3}")
    a(f"s_mul_i32 s{s_xb}, s{s_w}, {NS*SLOT}")
    a(f"s_add_u32 s{s_xb}, s{s_xb}, {XBASE}")
    def wo_calc(j):
        c0, c1 = wconst(2*j), wconst(2*j+1)
        a(f"s_cmp_eq_u32 s{s_wh}, 0")
        a(f"s_mov_b32 s{s_t0}, {c1}")
        a(f"s_cselect_b32 s{s_t0}, {c0}, s{s_t0}")
        a(f"s_add_u32 s{s_wo+j}, s{s_t0}, s{s_pb}")
    a(f"v_lshrrev_b32 v{t2}, 4, v0")
    a(f"v_and_b32 v{t3}, 15, v0")
    a(f"v_lshlrev_b32 v{vBi}, 4, v{t2}")

    def xrow_dma(r):
        L = []
        chk = r in (0, 12, 13)
        srd = sX2 if chk else sX
        def pre():
            if chk:
                a(f"s_cmp_lt_u32 s{s_iy}, 224")
                a(f"s_cselect_b32 s{sX2+2}, {XB}, 0")
            a(f"s_add_u32 m0, s{s_xb}, {(r % NS)*SLOT}")
        L.append(pre)
        for k in range(4):
            def ld(k=k):
                off = f" offset:{1024*k}" if k else ""
                if k == 3: a("s_mov_b64 exec, 0xfff")
                e.vmem(f"X{r}", f"buffer_load_dwordx4 v{vX+k}, s[{srd}:{srd+3}], s{s_xrow} offen{off} lds")
                if k == 3:
                    a("s_mov_b64 exec, -1")
                    a(f"s_add_u32 s{s_xrow}, s{s_xrow}, {XROW}")
                    if r in (0, 11, 12) or True: a(f"s_add_u32 s{s_iy}, s{s_iy}, 1")
            L.append(ld)
        return L
    def w_dma(j):
        L = []
        def pre():
            wo_calc(j)
            a(f"s_add_u32 m0, s{s_wmb}, {2*j*CH}")
        L.append(pre)
        for k in range(3):
            def ld(k=k):
                off = f" offset:{1024*k}" if k else ""
                e.vmem(f"W{j}", f"buffer_load_dwordx4 v{vWd+k}, s[{sW}:{sW+3}], s{s_wo+j} offen{off} lds")
            L.append(ld)
        return L
    vbt = vAcc
    def bi_loads():
        L = [lambda: None]
        for p in range(3):
            L.append(lambda p=p: e.vmem("BI", f"buffer_load_dwordx4 {q4(vbt+4*p)}, v{vBi}, s[{sBs}:{sBs+3}], 0 offen offset:{64*p}"))
        return L
    def grp(name):
        k, n = name[0], name[1:]
        if k == "X": return xrow_dma(int(n))
        if k == "W": return w_dma(int(n))
        if k == "B": return bi_loads()
        if k == "E": return [lambda: None, lambda: touch("TE", 7*EROWS[int(n)][1], vE + int(n), sX)]
        raise ValueError(name)
    def run(L):
        for i, f in enumerate(L):
            f()
            if i == 0: a("s_nop 0")
    def f_reads(r):
        L = []
        for b in range(2):
            for ks in range(3):
                def rd(b=b, ks=ks):
                    e.lds(f"F{r}", f"ds_read_b128 {Ffrag(r, b, ks)}, v{vB+b} offset:{(r % NS)*SLOT + 64*ks}")
                L.append(rd)
        return L
    def part_B():
        cm("---- LDS read addresses, store addresses ----")
        for b in range(2):
            a(f"v_add_u32 v{t4}, {1-b}, v{t3}")
            a(f"v_mul_u32_u24 v{t5}, 192, v{t4}")
            a(f"v_add_u32 v{t5}, v{t5}, v{vBi}")
            a(f"v_lshlrev_b32 v{t4}, 3, v{t4}")
            a(f"v_and_b32 v{t4}, 32, v{t4}")
            a(f"v_xor_b32 v{t5}, v{t5}, v{t4}")
            a(f"v_add_u32 v{vB+b}, s{s_xb}, v{t5}")
        a(f"v_and_b32 v{t4}, 1, v{t2}")
        a(f"v_mul_u32_u24 v{t4}, 3080, v{t4}")
        a(f"v_lshrrev_b32 v{t5}, 1, v{t2}")
        a(f"v_mul_u32_u24 v{t5}, 1536, v{t5}")
        a(f"v_add_u32 v{t4}, v{t4}, v{t5}")
        a(f"v_lshrrev_b32 v{t5}, 2, v{t3}")
        a(f"v_mul_u32_u24 v{t5}, 192, v{t5}")
        a(f"v_add_u32 v{t4}, v{t4}, v{t5}")
        a(f"v_and_b32 v{t5}, 3, v{t3}")
        a(f"v_lshlrev_b32 v{t5}, 4, v{t5}")
        a(f"v_add_u32 v{vW}, v{t4}, v{t5}")
        a(f"v_add_u32 v{vW+1}, {6*CH}, v{vW}")
        e_addr(1)
        a(f"s_lshl1_add_u32 s{s_t0}, s{s_m0}, s{s_py}")
        a(f"s_mulk_i32 s{s_t0}, 448")
        a(f"s_lshl_b32 s{s_t1}, s{s_strip}, 5")
        a(f"s_add_u32 s{s_t0}, s{s_t0}, s{s_t1}")
        a(f"s_add_u32 s{s_t0}, s{s_t0}, s{s_px}")
        a(f"s_mul_i32 s{s_o01}, s{s_t0}, 192")
        for k in range(1, NDT): a(f"s_add_u32 s{s_o01+k}, s{s_o01+k-1}, {OROW2}")
        a(f"s_add_u32 s{s_or+1}, s{s_o01}, {OROW2}")
        a(f"s_cmp_lt_u32 s{s_band}, 8")
        a(f"s_cselect_b32 s{s_R}, 13, 12")
        a(f"s_mul_i32 s{s_t0}, s{s_w}, {3*NDT*1024}")
        a(f"v_lshrrev_b32 v{t4}, 1, v{t3}")
        a(f"v_and_b32 v{t4}, 3, v{t4}")
        a(f"v_xor_b32 v{t4}, v{t4}, v{t2}")
        a(f"v_lshlrev_b32 v{t4}, 4, v{t4}")
        a(f"v_lshlrev_b32 v{t5}, 6, v{t3}")
        a(f"v_add3_u32 v{vTw}, v{t4}, v{t5}, s{s_t0}")
        a(f"v_lshrrev_b32 v{t1}, 2, v0")
        a(f"v_and_b32 v{t4}, 3, v0")
        a(f"v_mul_u32_u24 v{t5}, 384, v{t1}")
        a(f"v_lshl_add_u32 v{vO2}, v{t4}, 4, v{t5}")
        a(f"v_bfe_u32 v{t5}, v{t1}, 1, 2")
        a(f"v_xor_b32 v{t4}, v{t4}, v{t5}")
        a(f"v_lshlrev_b32 v{t4}, 4, v{t4}")
        a(f"v_lshlrev_b32 v{t5}, 6, v{t1}")
        a(f"v_add3_u32 v{vTr}, v{t4}, v{t5}, s{s_t0}")
        a(f"v_mul_u32_u24 v{t4}, 384, v{t3}")
        a(f"v_add_u32 v{vO}, v{t4}, v{vBi}")
        if opt.get("xp192"):
            for i in range(3):
                a(f"v_add_u32 v{t4}, {64*i}, v0")
                a(f"v_mul_u32_u24 v{t5}, 5462, v{t4}")
                a(f"v_lshrrev_b32 v{t5}, 16, v{t5}")
                a(f"v_mul_u32_u24 v{t1}, 12, v{t5}")
                a(f"v_sub_u32 v{t1}, v{t4}, v{t1}")
                a(f"v_mul_u32_u24 v{t5}, 384, v{t5}")
                a(f"v_lshlrev_b32 v{t1}, 4, v{t1}")
                a(f"v_add_u32 v{vP+i}, v{t5}, v{t1}")
    pre = str(opt.get("pre", "B,W0,X0,X1|W1,W2,X2,W3")).split("|")
    preA = pre[0].split(","); preB = pre[1].split(",") if len(pre) > 1 and pre[1] else []
    BF = opt.get("bfirst", 1)
    if BF: part_B()
    cm("---- first loads ----")
    for g_ in preA: run(grp(g_))
    stamp(3, 3)
    if not BF: part_B()
    for g_ in preB: run(grp(g_))
    stamp(4, 3)
    e.wait_vm("BI")
    stamp(5, 3)
    cm("bias -> fp32 accumulator initial values")
    for p in range(3):
        for h in range(2):
            for r in range(4):
                src = vbt + 4*p + (4*h+r)//2
                dst = vBias + 4*(2*p+h) + r
                if r & 1: a(f"v_and_b32 v{dst}, 0xffff0000, v{src}")
                else: a(f"v_lshlrev_b32 v{dst}, 16, v{src}")
    e.wait_vm("X0")
    for f in f_reads(0): f()
    e.wait_vm("X1")
    stamp(6, 3)
    for f in f_reads(1): f()

    cm("---- first pass: output rows 0 and 1, weights stream LDS -> registers ----")
    free = list(range(NQ))
    def take(): return vAcc + 4*free.pop(0)
    def give(r): free.append((r - vAcc)//4)
    acc = [[take() for t in range(6)] for tile in range(2)]
    LAG = opt.get("lag", 5)
    def rd_half(f, half):
        q, t = divmod(f, 6); p, h = divmod(t, 2)
        off = (q % 6)*CH + half*768 + 64*p + 8*h
        e.lds(f"R{f}", f"ds_read_b64_tr_b16 {whalf(f, half)}, v{vW + q//6} offset:{off}")
    def mf(d, f, bfr, c):
        a(f"v_mfma_f32_16x16x32_bf16 {q4(d)}, {wfrag(f)}, {bfr}, {q4(c)}")
    ex = {}
    def atg(G, f): ex.setdefault(G, []).append(f)
    for item in str(opt.get("inp", "W4@0,W5@3,X3@6,X4@10,E1@14")).split(","):
        if not item: continue
        name, pos = item.split("@"); pos = int(pos)
        L = grp(name)
        atg(2*pos, L[0])
        step = opt.get("pace", 1)
        for k, f in enumerate(L[1:]): atg(2*(pos + k*step) + 1, f)
    f2 = opt.get("f2pos", 29)
    atg(2*f2, lambda: e.wait_vm("X2"))
    for i, f in enumerate(f_reads(2)): atg(2*(f2+1+i) + 1, f)
    f3 = opt.get("f3pos", 60)
    atg(2*f3, lambda: e.wait_vm("X3"))
    for i, f in enumerate(f_reads(3)): atg(2*(f3+1+i) + 1, f)
    def stage_gate(n):
        if n < 72 and n % 12 == 0:
            e.wait_vm(f"W{n//12}")
            a("s_barrier")
            if n == 0: stamp(3); stamp(7, 3)
            stamp(1 + n//12, 2); stamp(n//12, 7)
    if opt.get("dsleep") and opt.get("dstile", 2) == 0:
        a("s_bitcmp1_b32 s2, %d" % opt.get("dsbit", 2))
        a("s_cbranch_scc%d L_nosleep" % (1 if opt.get("dsinv") else 0))
        a("s_sleep %d" % opt["dsleep"])
        e.lab("L_nosleep")
    for n in range(LAG):
        stage_gate(n)
        rd_half(n, 0); rd_half(n, 1)
    for m in range(72):
        n = m + LAG
        q, t = divmod(m, 6); aa, b, ks = qabk(q)
        if m == 0: e.wait_lg("F1")
        if m == 36: e.wait_lg("F2")
        e.wait_lg(f"R{m}")
        if m == 0: stamp(4)
        for tile in range(2):
            row = tile + (1 - aa)
            c = (vBias + 4*t) if q == 0 else acc[tile][t]
            mf(acc[tile][t], m, Ffrag(row, b, ks), c)
            if tile == 0: stage_gate(n)
            if n < 72: rd_half(n, tile)
            for f in ex.get(2*m + tile, []): f()
    assert 3*NDT*4096 <= 55000
    stamp(5); stamp(7, 2); stamp(6, 7); cstamp(0)

    pkfree = [vPk + 4*i for i in range(NPK)]
    rbfree = [vRb + 4*i for i in range(NRB)]
    def epi_ops(accq, p, tile):
        A, B = accq
        lt = tile < NDT
        box = {}
        cv = (lambda t: None) if opt.get("nocvt") else a
        def c0():
            box["pk"] = pkfree.pop(0)
            cv(f"v_cvt_pk_bf16_f32 v{box['pk']}, v{A}, v{A+1}")
        def c1(): cv(f"v_cvt_pk_bf16_f32 v{box['pk']+1}, v{A+2}, v{A+3}"); give(A)
        def c2(): cv(f"v_cvt_pk_bf16_f32 v{box['pk']+2}, v{B}, v{B+1}")
        def c3(): cv(f"v_cvt_pk_bf16_f32 v{box['pk']+3}, v{B+2}, v{B+3}"); give(B)
        off = f" offset:{64*p}" if p else ""
        fl = (" " + stf) if stf else ""
        slot = 3*tile + p
        def wr():
            e.lds(f"T{slot}w", f"ds_write_b128 v{vTw}, {q4(box['pk'])} offset:{slot*1024}")
            pkfree.append(box["pk"])
        def rd():
            box["rb"] = rbfree.pop(0)
            e.lds(f"T{slot}r", f"ds_read_b128 {q4(box['rb'])}, v{vTr} offset:{slot*1024}")
        def wt(): e.wait_lg(f"T{slot}r")
        def st():
            src = box["rb"] if lt else box["pk"]
            so = (s_o01 + tile) if tile < NDT else (s_or + tile % 4)
            if opt.get("xp192"):
                e.vmem("ST", f"buffer_store_dwordx4 {q4(src)}, v{vP+p}, s[{sO}:{sO+3}], s{so} offen{fl}")
            elif opt.get("cdata"):
                e.vmem("ST", f"buffer_store_dwordx4 {q4(vBias)}, v{vO2 if lt else vO}, s[{sO}:{sO+3}], s{so} offen{off}{fl}")
            elif not opt.get("nost"):
                e.vmem("ST", f"buffer_store_dwordx4 {q4(src)}, v{vO2 if lt else vO}, s[{sO}:{sO+3}], s{so} offen{off}{fl}")
            (rbfree if lt else pkfree).append(src)
        if lt: return [c0, c1], [c2, c3], [wr, rd, wt, st]
        return [c0, c1], [c2, c3], [st]
    SPREAD = ints(opt.get("spread", {2: "2,3,4,5,6,7", 3: "3,4,5,6,7,8,9,10,11", 4: "4,4,5,6,6,7,8,8,9,10,10,11"}[NDT]))
    deferred = {}
    def defer(k, fin, minpos=None):
        tl_ = SPREAD[k]
        nth = len([1 for kk in range(k) if SPREAD[kk] == tl_])
        p0 = ints(opt.get("defpos", "40,16,64"))[nth]
        if minpos is not None: p0 = max(p0, minpos)
        deferred.setdefault(tl_, []).extend([(p0, fin[1]), (p0 + 6, fin[2]), (p0 + 7, fin[3])])
    carry = []
    for tile in range(2):
        for p in range(3):
            c01, c23, fin = epi_ops((acc[tile][2*p], acc[tile][2*p+1]), p, tile)
            carry.append((c01 + c23, fin))
    def steady(i, carry_sched, force=None, record=None, bunch=None):
        cm(f"---- output row {i} ----")
        ex = {}
        def put(n, f): ex.setdefault(n, []).append(f)
        for n, L in carry_sched.items():
            for f in L: put(n, f)
        for n, f in deferred.get(i, []): put(n, f)
        put(1, lambda: a(f"s_add_u32 s{s_or + i % 4}, s{s_or + (i-1) % 4}, {OROW2}"))
        if i == 2: put(4, lambda: e.wait_lg("F3"))
        if i == opt.get("tewt", -1): put(opt.get("tewpos", 0), lambda: e.wait_vm("TE"))
        r = i + 2
        if i + 3 <= 13 and not opt.get("nodma") and bunch != "dma":
            dp = ints(opt.get("dma2", "50,55,60,65")) if i == 2 else ints(opt.get("dmapos", "2,4,26,28"))
            if isinstance(bunch, list):
                for k in range(2, 4): put(dp[k], bunch[1+k])
            else:
                L = xrow_dma(i + 3)
                put(dp[0] - 1, L[0])
                for k in range(4): put(dp[k], L[1+k])
        if r <= 13 and bunch != "F":
            if not opt.get("nodma") or r < 5: put(opt.get("xwpos", 40), lambda: e.wait_vm(f"X{r}"))
            rp = ints(opt.get("rdpos", "41,42,43,50,51,52"))
            for k, f in enumerate(f_reads(r)): put(rp[k], f)
            put(66, lambda: e.wait_lg(f"F{r}"))
        accs = []
        nxt = {}
        for t in range(6):
            if force is None: d = take()
            else:
                d = force[t]; free.remove((d - vAcc)//4)
            accs.append(d)
            if record is not None: record.append(d)
            for q in range(12):
                n = 12*t + q
                aa, b, ks = qabk(q)
                row = i + (1 - aa)
                c = (vBias + 4*t) if q == 0 else d
                if PM == 6 and i == opt.get("ptile", 2) and q == 0: stamp(t, 6)
                if PM == 6 and i == opt.get("ptile", 2) + 1 and n == 0: stamp(6, 6)
                if PM == 6 and i == opt.get("ptile", 2) + 1 and n == 36: stamp(7, 6)
                mf(d, q*6 + t, Ffrag(row, b, ks), c)
                for f in ex.get(n, []): f()
            if t % 2 == 1:
                p = t//2
                c01, c23, fin = epi_ops((accs[t-1], accs[t]), p, i)
                base = 12*t + 12
                so_ = ints(opt.get("stoff", "10,10,10"))[p] if i >= NDT else 10
                tgt = [(base + 0, c01[0]), (base + 1, c01[1]), (base + 8, c23[0]), (base + 9, c23[1]), (base + so_, fin[0])]
                if i < NDT and force is None:
                    assert SPREAD[3*i + p] > i
                    defer(3*i + p, fin)
                for n_, f in tgt:
                    if n_ < 72: put(n_, f)
                    else: nxt.setdefault(n_ - 72, []).append(f)
        return nxt
    cs = {}
    cstep = opt.get("cstep", 6)
    for k, (cv_, fin) in enumerate(carry):
        b0 = cstep*k
        for j, f in enumerate(cv_): cs.setdefault(b0 + j, []).append(f)
        cs.setdefault(b0 + 4, []).append(fin[0])
        defer(k, fin, b0 + 6 if SPREAD[k] == 2 else None)
    def tail(em_carry):
        cm("---- last quarter of the last row ----")
        a("s_nop 7")
        for n in sorted(em_carry):
            for f in em_carry[n]: f()
    def prof_dump(em):
        if not T0: return
        b = em.a
        b("s_waitcnt vmcnt(0)")
        if PM == 1: b(f"s_memrealtime s[{70+14}:{71+14}]")
        b("s_waitcnt lgkmcnt(0)")
        b("s_load_dwordx2 s[4:5], s[0:1], 40")
        b("s_waitcnt lgkmcnt(0)")
        b("s_mov_b32 s8, s4"); b("s_and_b32 s9, s5, 0xffff"); b("s_mov_b32 s10, 0x10000000"); b("s_mov_b32 s11, 0x20000")
        b("v_mov_b32 v1, 0")
        for i in range(8): b(f"v_writelane_b32 v1, s{70+2*i}, {i}")
        b(f"v_writelane_b32 v1, s{s_R}, 14")
        b("s_sub_u32 s86, s88, s86")
        b(f"v_writelane_b32 v1, s86, 13")
        b("s_getreg_b32 s87, hwreg(HW_REG_XCC_ID)")
        b(f"v_writelane_b32 v1, s87, 12")
        b(f"s_lshl_b32 s6, s2, 2"); b(f"s_add_u32 s6, s6, s{s_w}"); b("s_lshl_b32 s6, s6, 6")
        b("v_lshlrev_b32 v3, 2, v0")
        b("v_cmp_gt_u32 vcc, 16, v0")
        b("s_and_saveexec_b64 s[12:13], vcc")
        b("buffer_store_dword v1, v3, s[8:11], s6 offen")
        b("s_waitcnt vmcnt(0)")
    nxt = cs
    saved = None
    STAG = opt.get("stag", 2)
    VERS = {}; vstate = {}; vrec = {}
    if STAG >= 1:
        VERS[2] = ("carry", 0, 0, ["half of the workgroups convert the first two rows before row 2 instead of inside it (and fetch /",
                                   "read the next input row up front in rows 3, 4): this de-synchronises the write bursts"])
    if STAG >= 2: VERS[3] = ("dma", opt.get("bit3", 6), 1, [])
    if STAG >= 3: VERS[opt.get("tile4", 5)] = (opt.get("kind4", "half"), opt.get("bit4", 5), 1, [])
    tl = ints(opt.get("tl", "2,3,4,5,6,8,10"))
    for i in range(2, 13):
        if i == 12:
            a(f"s_cmp_eq_u32 s{s_R}, 12")
            a("s_cbranch_scc1 L_tail12")
            saved = (e.clone(), dict(nxt), list(pkfree), list(rbfree))
        if opt.get("dvar") and i == opt.get("dstile", 2):
            mode = opt["dvar"]
            if mode == "x8": a("s_and_b32 s90, s2, 7")
            elif mode == "x8r":
                a("s_and_b32 s90, s2, 7"); a("s_sub_u32 s90, 7, s90")
            elif mode == "ph": a("s_bfe_u32 s90, s2, 0x20003")
            elif mode == "w": a(f"s_mov_b32 s90, s{s_w}")
            elif mode == "xw":
                a("s_and_b32 s90, s2, 1"); a("s_lshl_b32 s90, s90, 2"); a(f"s_add_u32 s90, s90, s{s_w}")
            elif mode == "g8": a("s_lshr_b32 s90, s2, 5")
            elif mode == "k4":
                a("s_and_b32 s90, s2, 1"); a("s_xor_b32 s90, s90, 1"); a("s_lshl_b32 s90, s90, 1")
                a("s_bfe_u32 s91, s2, 0x10005"); a("s_add_u32 s90, s90, s91")
            elif mode in ("ab", "abx"):
                a("s_bfe_u32 s90, s2, 0x10005")
                if mode == "abx":
                    a("s_and_b32 s91, s2, 1"); a("s_xor_b32 s90, s90, s91")
                a("s_mul_i32 s90, s90, 3")
                a("s_bfe_u32 s91, s2, 0x10006"); a("s_lshl_b32 s91, s91, 2"); a("s_add_u32 s90, s90, s91")
            elif mode == "g4":
                a("s_bfe_u32 s90, s2, 0x20005")
            elif mode == "g2":
                a("s_bfe_u32 s90, s2, 0x10005")
            elif mode == "p4":
                a("s_bfe_u32 s90, s2, 0x20003")
            e.lab("L_dv")
            a("s_cmp_eq_u32 s90, 0")
            a("s_cbranch_scc1 L_dvdone")
            a("s_sleep %d" % opt.get("dunit", 1))
            a("s_sub_u32 s90, s90, 1")
            a("s_branch L_dv")
            e.lab("L_dvdone")
        if opt.get("dsleep") and i == opt.get("dstile", 2):
            a("s_bitcmp1_b32 s2, %d" % opt.get("dsbit", 2))
            a("s_cbranch_scc%d L_nosleep" % (1 if opt.get("dsinv") else 0))
            a("s_sleep %d" % opt["dsleep"])
            e.lab("L_nosleep")
        if i in tl: stamp(1 + tl.index(i), 5)
        if i == 3: stamp(7, 7)
        if i in VERS:
            kind, bit, scc, why = VERS[i]
            if i - 1 in VERS: e.lab(f"L_row{i}")
            for w_ in why: cm(w_)
            a(f"s_bitcmp1_b32 s2, {bit}")
            a(f"s_cbranch_scc{scc} L_row{i}_alt")
            vstate[i] = (e.clone(), list(free), list(pkfree), list(rbfree), dict(nxt))
            vrec[i] = []
            nxt = steady(i, nxt, record=vrec[i])
            if i + 1 not in VERS: e.lab(f"L_row{i+1}")
        else:
            nxt = steady(i, nxt)
    stamp(6); cstamp(1)
    tail(nxt)
    prof_dump(e)
    a("s_endpgm")
    em0, nx0, pk0, rb0 = saved
    L_main = e.L
    e.L = []; e.vm = em0.vm; e.lg = em0.lg; e.vm_done = em0.vm_done; e.lg_done = em0.lg_done
    pkfree[:] = pk0; rbfree[:] = rb0
    e.lab("L_tail12")
    stamp(6); cstamp(1)
    tail(nx0)
    prof_dump(e)
    e.lab("L_end")
    a("s_endpgm")
    for i in sorted(VERS):
        kind = VERS[i][0]
        emB, frB, pkB, rbB, csB = vstate[i]
        e.vm = emB.vm; e.lg = emB.lg; e.vm_done = emB.vm_done; e.lg_done = emB.lg_done
        free[:] = frB; pkfree[:] = pkB; rbfree[:] = rbB
        e.lab(f"L_row{i}_alt")
        if kind == "carry":
            for n in sorted(csB):
                for f in csB[n]: f()
            steady(i, {}, force=vrec[i])
        elif kind == "dma":
            L = xrow_dma(i + 3)
            seq = [f for n in sorted(csB) for f in csB[n]]
            L[0](); seq[0]()
            for f in L[1:]: f()
            for f in seq[1:]: f()
            steady(i, {}, force=vrec[i], bunch="dma")
        elif kind == "half":
            L = xrow_dma(i + 3)
            seq = [f for n in sorted(csB) for f in csB[n]]
            L[0](); seq[0](); L[1](); L[2](); seq[1]()
            a("s_nop 0");
            for f in seq[2:]: f()
            steady(i, {}, force=vrec[i], bunch=L)
        elif kind == "F":
            e.wait_vm(f"X{i+2}")
            for f in f_reads(i + 2): f()
            e.wait_lg(f"F{i+2}")
            steady(i, csB, force=vrec[i], bunch="F")
        a(f"s_branch L_row{i+1}")
    e.lab("L_codeend")
    body = "\n".join(L_main + e.L)
    hdr = f"""; ConvTranspose2d(k=4, stride 2, pad 1), NHWC bf16: x[224][224][96], w[4][4][96][96], b[96] -> out[448][448][96]
; out[2m+py][2n+px] = b + sum over a,b in {{0,1}} of x[m+py-a][n+px-b] . w[1-py+2a][1-px+2b]   (4 phases, K = 4*96)
; One workgroup = one phase (py,px); the 4 taps (96x96 each) live in registers (288 per lane) as MFMA A operands.
; @launch grid=(256,1,1) block=(256,1,1) lds={LDS}
.amdgcn_target "amdgcn-amd-amdhsa--gfx950"
.text
.globl {KNAME}
.p2align 8
.type {KNAME},@function
{KNAME}:
{body}
.section .rodata,"a"
.p2align 6
.amdhsa_kernel {KNAME}
  .amdhsa_next_free_vgpr 512
  .amdhsa_next_free_sgpr 100
  .amdhsa_accum_offset 256
  .amdhsa_group_segment_fixed_size 0
  .amdhsa_kernarg_size 48
  .amdhsa_user_sgpr_count 2
  .amdhsa_user_sgpr_kernarg_segment_ptr 1
  .amdhsa_system_sgpr_workgroup_id_x 1
.end_amdhsa_kernel
"""
    return hdr

if __name__ == "__main__":
    import mk
    out = sys.argv[1] if len(sys.argv) > 1 else "final.s"
    opt = {}
    for x in sys.argv[2:]:
        k, v = x.split("=")
        opt[k] = int(v) if v.lstrip("-").isdigit() else v
    open(out, "w").write(gen(opt))
    print(mk.build(out))
```

```python
import sys
KNAME = "standalone__transposed_strided__vision_kernel"
XB = 9633792; WB = 294912; OB = 38535168
XROW = 224*192
OROW2 = 2*448*192
CH = 6160
XBASE = 73984
NS = 5
SLOT = 4096
LDS = XBASE + 4*NS*SLOT

class Em:
    def __init__(s):
        s.L = []; s.vm = []; s.lg = []; s.vm_done = 0; s.lg_done = 0
    def clone(s):
        e = Em(); e.vm = list(s.vm); e.lg = list(s.lg); e.vm_done = s.vm_done; e.lg_done = s.lg_done
        return e
    def a(s, t): s.L.append("    " + t)
    def c(s, t): s.L.append("    ; " + t)
    def lab(s, t): s.L.append(t + ":")
    def vmem(s, tag, t): s.a(t); s.vm.append(tag)
    def lds(s, tag, t): s.a(t); s.lg.append(tag)
    def wait_vm(s, tag):
        idx = max(i for i, x in enumerate(s.vm) if x == tag) + 1
        if idx <= s.vm_done: return
        n = len(s.vm) - idx
        assert n <= 63
        s.a(f"s_waitcnt vmcnt({n})"); s.vm_done = idx
    def wait_lg(s, tag):
        idx = max(i for i, x in enumerate(s.lg) if x == tag) + 1
        if idx <= s.lg_done: return
        n = len(s.lg) - idx
        assert n <= 15, (n, tag)
        s.a(f"s_waitcnt lgkmcnt({n})"); s.lg_done = idx

def ints(x): return [int(v) for v in str(x).split(",")]

def gen(opt):
    stf = opt.get("stflags", "sc1")
    T0 = opt.get("prof", False)
    PM = opt.get("pm", 1)
    NDT = opt.get("ndt", 3)
    e = Em(); a = e.a; cm = e.c
    V = 0
    def alloc(n, al=1):
        nonlocal V
        V = (V + al - 1)//al*al
        r = V; V += n; return r
    v_tid = alloc(1)
    vT = alloc(5)
    vPf = alloc(1)
    vX = alloc(4)
    vWd = alloc(3)
    vB = alloc(2)
    vW = alloc(2)
    vO = alloc(1)
    vBi = alloc(1)
    vO2 = alloc(1)
    vD = alloc(1)
    vE = alloc(2)
    vER = alloc(2)
    vP = alloc(3)
    vTw = alloc(1, 2); vTr = alloc(1)
    vF = [alloc(24, 4) for _ in range(3)]
    NQ = 14
    vAcc = alloc(4*NQ, 4)
    vBias = alloc(24, 4)
    NPK = 4
    vPk = alloc(4*NPK, 4)
    NRB = 3
    vRb = alloc(4*NRB, 4)
    vWv = alloc(32, 4)
    assert V <= 256, V
    def wfrag(f):
        return (f"a[{4*f}:{4*f+3}]" if f < 64 else f"v[{vWv+4*(f-64)}:{vWv+4*(f-64)+3}]")
    def whalf(f, h):
        if f < 64: return f"a[{4*f+2*h}:{4*f+2*h+1}]"
        r = vWv+4*(f-64)+2*h
        return f"v[{r}:{r+1}]"
    def Ffrag(row, b, ks):
        r = vF[row % 3] + 4*(b*3+ks)
        return f"v[{r}:{r+3}]"
    def q4(r): return f"v[{r}:{r+3}]"
    sX, sX2, sW, sBs, sO = 12, 16, 20, 24, 28
    s_w, s_wh, s_o, s_px, s_py, s_strip, s_band, s_m0, s_R = 32, 33, 34, 35, 36, 37, 38, 39, 40
    s_t0, s_t1, s_t2, s_t3 = 41, 42, 43, 44
    s_xrow, s_iy, s_xb, s_pb, s_wmb = 45, 46, 47, 48, 49
    s_wo = 50
    s_or = 56
    s_mk = 60
    s_pc = 66
    s_o01 = 92
    s_e0, s_e1, s_iw = 96, 97, 98
    def stamp(i, pm=1):
        if T0 and pm == PM: a(f"s_mem{'time' if pm >= 6 else 'realtime'} s[{70+2*i}:{71+2*i}]")
    def cstamp(i):
        if T0: a(f"s_memtime s[{86+2*i}:{87+2*i}]")
    def qabk(q):
        aa = 1 - q//6; b = (q % 6)//3; ks = q % 3
        return aa, b, ks
    def wconst(q):
        aa, b, ks = qabk(q)
        return (8*aa + 2*b)*18432 + ks*6144
    t1, t2, t3, t4, t5 = [vT+i for i in range(5)]
    EROWS = [tuple(int(v) for v in x.split(":")) for x in str(opt.get("erows", "-1:4,5:9")).split(",")]

    cm("---- decode workgroup / wave, start the L2 prefetches as early as possible ----")
    for pm in (1, 2, 3, 5): stamp(0, pm)
    a("s_cmp_ge_u32 s2, 256")
    a("s_cbranch_scc1 L_end")
    a("s_load_dwordx4 s[4:7], s[0:1], 0")
    a("s_load_dwordx4 s[8:11], s[0:1], 16")
    a(f"v_lshrrev_b32 v{t4}, 6, v0")
    a(f"s_getpc_b64 s[{s_pc}:{s_pc+1}]")
    e.lab("L_pc")
    a(f"v_readfirstlane_b32 s{s_w}, v{t4}")
    a(f"v_and_b32 v0, 63, v0")
    assert vTw % 2 == 0 and vTr == vTw + 1
    a(f"s_lshr_b32 s{s_iw}, s2, 3")
    a(f"s_lshl2_add_u32 s{s_iw}, s{s_iw}, s{s_w}")
    cm("each wave pulls two 128-byte lines of this kernel's code into L2")
    a(f"s_lshl_b32 s{s_t0}, s{s_iw}, 7")
    a(f"v_lshrrev_b32 v{t1}, 5, v0")
    a(f"v_lshlrev_b32 v{t1}, 14, v{t1}")
    a(f"v_add_u32 v{t1}, s{s_t0}, v{t1}")
    a(f"v_min_u32 v{t1}, L_codeend-L_pc-4, v{t1}")
    a(f"v_mov_b32 v{vTw+1}, s{s_pc+1}")
    a(f"v_add_co_u32 v{vTw}, vcc, s{s_pc}, v{t1}")
    LUT = opt.get("slotlut", "0x37652104")
    if LUT != "none":
        a(f"s_and_b32 s{s_t0}, s2, 7")
        a(f"s_lshl_b32 s{s_t0}, s{s_t0}, 2")
        a(f"s_or_b32 s{s_t0}, s{s_t0}, 0x30000")
        a(f"s_bfe_u32 s{s_t0}, {LUT}, s{s_t0}")
    else:
        a(f"s_and_b32 s{s_t0}, s2, 7")
    a(f"s_lshr_b32 s{s_t1}, s2, 5")
    a(f"v_addc_co_u32 v{vTw+1}, vcc, 0, v{vTw+1}, vcc")
    e.vmem("PF", f"global_load_dword v{vPf}, v[{vTw}:{vTw+1}], off")
    cm("unit group c: 13-row groups (c < 28) on slots 0..3: c = 7*slot + grp (grp < 7), c = 60 + slot (grp == 7);")
    cm("slots 4..7: c = 28 + 8*(slot-4) + grp.  c == 63 has no work.")
    a(f"s_mul_i32 s{s_t2}, s{s_t0}, 7")
    a(f"s_add_u32 s{s_t2}, s{s_t2}, s{s_t1}")
    a(f"s_add_u32 s{s_t3}, s{s_t0}, 60")
    a(f"s_cmp_eq_u32 s{s_t1}, 7")
    a(f"s_cselect_b32 s{s_t2}, s{s_t3}, s{s_t2}")
    a(f"s_lshl3_add_u32 s{s_t3}, s{s_t0}, s{s_t1}")
    a(f"s_sub_u32 s{s_t3}, s{s_t3}, 4")
    a(f"s_cmp_lt_u32 s{s_t0}, 4")
    a(f"s_cselect_b32 s{s_t1}, s{s_t2}, s{s_t3}")
    a(f"s_cmp_ge_u32 s{s_t1}, 63")
    a("s_cbranch_scc1 L_end")
    a(f"s_bfe_u32 s{s_px}, s2, 0x10003")
    a(f"s_bfe_u32 s{s_py}, s2, 0x10004")
    a(f"s_lshl2_add_u32 s{s_t1}, s{s_t1}, s{s_w}")
    a(f"s_mul_i32 s{s_band}, s{s_t1}, 4682")
    a(f"s_lshr_b32 s{s_band}, s{s_band}, 16")
    a(f"s_mul_i32 s{s_t0}, s{s_band}, 14")
    a(f"s_sub_u32 s{s_strip}, s{s_t1}, s{s_t0}")
    a(f"s_min_u32 s{s_t0}, s{s_band}, 8")
    a(f"s_mul_i32 s{s_m0}, s{s_band}, 12")
    a(f"s_add_u32 s{s_m0}, s{s_m0}, s{s_t0}")
    cm("x L2 prefetch: the 4 phase workgroups of a group each touch 7 of the 28 lines of a row segment")
    a(f"v_mul_u32_u24 v{vER}, 9363, v0")
    a(f"s_lshl1_add_u32 s{s_t0}, s{s_py}, s{s_px}")
    a(f"v_lshrrev_b32 v{vER}, 16, v{vER}")
    a(f"s_mul_i32 s{s_t0}, s{s_t0}, 7")
    a(f"v_mul_u32_u24 v{t5}, 7, v{vER}")
    a(f"s_mul_i32 s{s_t1}, s{s_strip}, 24")
    a(f"v_sub_u32 v{t5}, v0, v{t5}")
    a(f"s_add_u32 s{s_t0}, s{s_t0}, s{s_t1}")
    a(f"s_sub_u32 s{s_t0}, s{s_t0}, 2")
    a(f"v_add_u32 v{t5}, s{s_t0}, v{t5}")
    a(f"v_max_i32 v{t5}, 0, v{t5}")
    a(f"v_lshlrev_b32 v{vER+1}, 7, v{t5}")
    a(f"s_movk_i32 s{s_e0}, 223")
    a(f"s_mov_b32 s{s_e1}, {XROW}")
    def e_addr(k):
        a(f"s_add_i32 s{s_t1}, s{s_m0}, {EROWS[k][0]}")
        a(f"v_add_u32 v{t5}, s{s_t1}, v{vER}")
        a(f"v_med3_i32 v{t5}, v{t5}, 0, s{s_e0}")
        a(f"v_mad_u32_u24 v{vE+k}, v{t5}, s{s_e1}, v{vER+1}")
    e_addr(0)
    cm("weight L2 prefetch: 18 lines per wave")
    a(f"s_mul_i32 s{s_t0}, s{s_iw}, {18*128}")
    a(f"v_lshlrev_b32 v{t4}, 7, v0")
    a(f"v_add_u32 v{vD}, s{s_t0}, v{t4}")
    for s_, size in ((sX, XB), (sW, WB)):
        a(f"s_mov_b32 s{s_+2}, {size}")
        a(f"s_mov_b32 s{s_+3}, 0x20000")
    a("s_waitcnt lgkmcnt(0)")
    stamp(1); stamp(1, 3)
    for s_, p in ((sX, 4), (sW, 6)):
        a(f"s_mov_b32 s{s_}, s{p}")
        a(f"s_and_b32 s{s_+1}, s{p+1}, 0xffff")
    def touch(tag, nl, vaddr, srd):
        a(f"s_mov_b32 exec_lo, {hex((1 << min(nl, 32)) - 1)}")
        a(f"s_mov_b32 exec_hi, {hex((1 << max(nl - 32, 0)) - 1)}")
        e.vmem(tag, f"buffer_load_dword v{vPf}, v{vaddr}, s[{srd}:{srd+3}], 0 offen")
        a("s_mov_b64 exec, -1")
    touch("TE", 7*EROWS[0][1], vE, sX)
    touch("TD", 18, vD, sW)
    stamp(2, 3)

    cm("---- addresses of the LDS-DMA loads ----")
    for s_, p, size in ((sX2, 4, None), (sBs, 8, 192), (sO, 10, OB)):
        a(f"s_mov_b32 s{s_}, s{p}")
        a(f"s_and_b32 s{s_+1}, s{p+1}, 0xffff")
        if size: a(f"s_mov_b32 s{s_+2}, {size}")
        a(f"s_mov_b32 s{s_+3}, 0x20000")
    a(f"s_add_u32 s{s_iy}, s{s_m0}, s{s_py}")
    a(f"s_sub_u32 s{s_iy}, s{s_iy}, 1")
    a(f"s_mul_i32 s{s_xrow}, s{s_iy}, {XROW}")
    a(f"s_lshl4_add_u32 s{s_t0}, s{s_strip}, s{s_px}")
    a(f"s_sub_u32 s{s_t1}, s{s_t0}, 1")
    a(f"s_mulk_i32 s{s_t1}, 192")
    a(f"s_cmp_eq_u32 s{s_t0}, 0")
    a(f"s_cselect_b32 s{s_t2}, 12, 0")
    a(f"s_cmpk_gt_u32 s{s_t0}, 208")
    a(f"s_cselect_b32 s{s_t3}, 0, 12")
    a(f"s_mov_b32 s{s_mk}, 0")
    a(f"s_mov_b32 s{s_mk+1}, 0xffff0000")
    a(f"s_mov_b32 s{s_mk+2}, -1")
    a(f"s_mov_b32 s{s_mk+3}, 0")
    a(f"s_mov_b32 s{s_mk+4}, 0xffff0000")
    a(f"s_mov_b32 s{s_mk+5}, -1")
    a(f"v_lshlrev_b32 v{vWd}, 4, v0")
    a(f"v_xor_b32 v{t1}, 32, v{vWd}")
    a(f"v_add_u32 v{t1}, s{s_t1}, v{t1}")
    a(f"v_add_u32 v{vX+3}, s{s_t1}, v{vWd}")
    a(f"v_bfrev_b32 v{t3}, 1")
    a(f"v_cmp_gt_u32 vcc, s{s_t2}, v0")
    a(f"v_cndmask_b32 v{vX}, v{vX+3}, v{t1}, s[{s_mk}:{s_mk+1}]")
    a(f"v_cndmask_b32 v{vX+1}, v{vX+3}, v{t1}, s[{s_mk+2}:{s_mk+3}]")
    a(f"v_cndmask_b32 v{vX}, v{vX}, v{t3}, vcc")
    a(f"v_cmp_le_u32 vcc, s{s_t3}, v0")
    a(f"v_cndmask_b32 v{vX+2}, v{vX+3}, v{t1}, s[{s_mk+4}:{s_mk+5}]")
    a(f"v_lshrrev_b32 v{t2}, 5, v0")
    a(f"v_cndmask_b32 v{vX+3}, v{vX+3}, v{t3}, vcc")
    a(f"v_mul_u32_u24 v{t2}, 1536, v{t2}")
    a(f"v_add_u32 v{vWd+1}, v{vWd}, v{t2}")
    a(f"v_add_u32 v{vWd+2}, 1536, v{vWd}")
    a(f"s_lshr_b32 s{s_wh}, s{s_w}, 1")
    a(f"s_and_b32 s{s_o}, s{s_w}, 1")
    a(f"s_lshl2_add_u32 s{s_t0}, s{s_py}, s{s_px}")
    a(f"s_sub_u32 s{s_t0}, 5, s{s_t0}")
    a(f"s_mul_i32 s{s_pb}, s{s_t0}, 18432")
    a(f"s_mul_i32 s{s_t0}, s{s_o}, 1536")
    a(f"s_add_u32 s{s_pb}, s{s_pb}, s{s_t0}")
    a(f"s_mul_i32 s{s_t2}, s{s_o}, 3080")
    a(f"s_mul_i32 s{s_t3}, s{s_wh}, {CH}")
    a(f"s_add_u32 s{s_wmb}, s{s_t2}, s{s_t3}")
    a(f"s_mul_i32 s{s_xb}, s{s_w}, {NS*SLOT}")
    a(f"s_add_u32 s{s_xb}, s{s_xb}, {XBASE}")
    def wo_calc(j):
        c0, c1 = wconst(2*j), wconst(2*j+1)
        a(f"s_cmp_eq_u32 s{s_wh}, 0")
        a(f"s_mov_b32 s{s_t0}, {c1}")
        a(f"s_cselect_b32 s{s_t0}, {c0}, s{s_t0}")
        a(f"s_add_u32 s{s_wo+j}, s{s_t0}, s{s_pb}")
    a(f"v_lshrrev_b32 v{t2}, 4, v0")
    a(f"v_and_b32 v{t3}, 15, v0")
    a(f"v_lshlrev_b32 v{vBi}, 4, v{t2}")

    def xrow_dma(r):
        L = []
        chk = r in (0, 12, 13)
        srd = sX2 if chk else sX
        def pre():
            if chk:
                a(f"s_cmp_lt_u32 s{s_iy}, 224")
                a(f"s_cselect_b32 s{sX2+2}, {XB}, 0")
            a(f"s_add_u32 m0, s{s_xb}, {(r % NS)*SLOT}")
        L.append(pre)
        for k in range(4):
            def ld(k=k):
                off = f" offset:{1024*k}" if k else ""
                if k == 3: a("s_mov_b64 exec, 0xfff")
                e.vmem(f"X{r}", f"buffer_load_dwordx4 v{vX+k}, s[{srd}:{srd+3}], s{s_xrow} offen{off} lds")
                if k == 3:
                    a("s_mov_b64 exec, -1")
                    a(f"s_add_u32 s{s_xrow}, s{s_xrow}, {XROW}")
                    if r in (0, 11, 12) or True: a(f"s_add_u32 s{s_iy}, s{s_iy}, 1")
            L.append(ld)
        return L
    def w_dma(j):
        L = []
        def pre():
            wo_calc(j)
            a(f"s_add_u32 m0, s{s_wmb}, {2*j*CH}")
        L.append(pre)
        for k in range(3):
            def ld(k=k):
                off = f" offset:{1024*k}" if k else ""
                e.vmem(f"W{j}", f"buffer_load_dwordx4 v{vWd+k}, s[{sW}:{sW+3}], s{s_wo+j} offen{off} lds")
            L.append(ld)
        return L
    vbt = vAcc
    def bi_loads():
        L = [lambda: None]
        for p in range(3):
            L.append(lambda p=p: e.vmem("BI", f"buffer_load_dwordx4 {q4(vbt+4*p)}, v{vBi}, s[{sBs}:{sBs+3}], 0 offen offset:{64*p}"))
        return L
    def grp(name):
        k, n = name[0], name[1:]
        if k == "X": return xrow_dma(int(n))
        if k == "W": return w_dma(int(n))
        if k == "B": return bi_loads()
        if k == "E": return [lambda: None, lambda: touch("TE", 7*EROWS[int(n)][1], vE + int(n), sX)]
        raise ValueError(name)
    def run(L):
        for i, f in enumerate(L):
            f()
            if i == 0: a("s_nop 0")
    def f_reads(r):
        L = []
        for b in range(2):
            for ks in range(3):
                def rd(b=b, ks=ks):
                    e.lds(f"F{r}", f"ds_read_b128 {Ffrag(r, b, ks)}, v{vB+b} offset:{(r % NS)*SLOT + 64*ks}")
                L.append(rd)
        return L
    def part_B():
        cm("---- LDS read addresses, store addresses ----")
        for b in range(2):
            a(f"v_add_u32 v{t4}, {1-b}, v{t3}")
            a(f"v_mul_u32_u24 v{t5}, 192, v{t4}")
            a(f"v_add_u32 v{t5}, v{t5}, v{vBi}")
            a(f"v_lshlrev_b32 v{t4}, 3, v{t4}")
            a(f"v_and_b32 v{t4}, 32, v{t4}")
            a(f"v_xor_b32 v{t5}, v{t5}, v{t4}")
            a(f"v_add_u32 v{vB+b}, s{s_xb}, v{t5}")
        a(f"v_and_b32 v{t4}, 1, v{t2}")
        a(f"v_mul_u32_u24 v{t4}, 3080, v{t4}")
        a(f"v_lshrrev_b32 v{t5}, 1, v{t2}")
        a(f"v_mul_u32_u24 v{t5}, 1536, v{t5}")
        a(f"v_add_u32 v{t4}, v{t4}, v{t5}")
        a(f"v_lshrrev_b32 v{t5}, 2, v{t3}")
        a(f"v_mul_u32_u24 v{t5}, 192, v{t5}")
        a(f"v_add_u32 v{t4}, v{t4}, v{t5}")
        a(f"v_and_b32 v{t5}, 3, v{t3}")
        a(f"v_lshlrev_b32 v{t5}, 4, v{t5}")
        a(f"v_add_u32 v{vW}, v{t4}, v{t5}")
        a(f"v_add_u32 v{vW+1}, {6*CH}, v{vW}")
        e_addr(1)
        a(f"s_lshl1_add_u32 s{s_t0}, s{s_m0}, s{s_py}")
        a(f"s_mulk_i32 s{s_t0}, 448")
        a(f"s_lshl_b32 s{s_t1}, s{s_strip}, 5")
        a(f"s_add_u32 s{s_t0}, s{s_t0}, s{s_t1}")
        a(f"s_add_u32 s{s_t0}, s{s_t0}, s{s_px}")
        a(f"s_mul_i32 s{s_o01}, s{s_t0}, 192")
        for k in range(1, NDT): a(f"s_add_u32 s{s_o01+k}, s{s_o01+k-1}, {OROW2}")
        a(f"s_add_u32 s{s_or+1}, s{s_o01}, {OROW2}")
        a(f"s_cmp_lt_u32 s{s_band}, 8")
        a(f"s_cselect_b32 s{s_R}, 13, 12")
        a(f"s_mul_i32 s{s_t0}, s{s_w}, {3*NDT*1024}")
        a(f"v_lshrrev_b32 v{t4}, 1, v{t3}")
        a(f"v_and_b32 v{t4}, 3, v{t4}")
        a(f"v_xor_b32 v{t4}, v{t4}, v{t2}")
        a(f"v_lshlrev_b32 v{t4}, 4, v{t4}")
        a(f"v_lshlrev_b32 v{t5}, 6, v{t3}")
        a(f"v_add3_u32 v{vTw}, v{t4}, v{t5}, s{s_t0}")
        a(f"v_lshrrev_b32 v{t1}, 2, v0")
        a(f"v_and_b32 v{t4}, 3, v0")
        a(f"v_mul_u32_u24 v{t5}, 384, v{t1}")
        a(f"v_lshl_add_u32 v{vO2}, v{t4}, 4, v{t5}")
        a(f"v_bfe_u32 v{t5}, v{t1}, 1, 2")
        a(f"v_xor_b32 v{t4}, v{t4}, v{t5}")
        a(f"v_lshlrev_b32 v{t4}, 4, v{t4}")
        a(f"v_lshlrev_b32 v{t5}, 6, v{t1}")
        a(f"v_add3_u32 v{vTr}, v{t4}, v{t5}, s{s_t0}")
        a(f"v_mul_u32_u24 v{t4}, 384, v{t3}")
        a(f"v_add_u32 v{vO}, v{t4}, v{vBi}")
        if opt.get("xp192"):
            for i in range(3):
                a(f"v_add_u32 v{t4}, {64*i}, v0")
                a(f"v_mul_u32_u24 v{t5}, 5462, v{t4}")
                a(f"v_lshrrev_b32 v{t5}, 16, v{t5}")
                a(f"v_mul_u32_u24 v{t1}, 12, v{t5}")
                a(f"v_sub_u32 v{t1}, v{t4}, v{t1}")
                a(f"v_mul_u32_u24 v{t5}, 384, v{t5}")
                a(f"v_lshlrev_b32 v{t1}, 4, v{t1}")
                a(f"v_add_u32 v{vP+i}, v{t5}, v{t1}")
    pre = str(opt.get("pre", "B,W0,X0,X1|W1,W2,X2,W3")).split("|")
    preA = pre[0].split(","); preB = pre[1].split(",") if len(pre) > 1 and pre[1] else []
    BF = opt.get("bfirst", 1)
    if BF: part_B()
    cm("---- first loads ----")
    for g_ in preA: run(grp(g_))
    stamp(3, 3)
    if not BF: part_B()
    for g_ in preB: run(grp(g_))
    stamp(4, 3)
    e.wait_vm("BI")
    stamp(5, 3)
    cm("bias -> fp32 accumulator initial values")
    for p in range(3):
        for h in range(2):
            for r in range(4):
                src = vbt + 4*p + (4*h+r)//2
                dst = vBias + 4*(2*p+h) + r
                if r & 1: a(f"v_and_b32 v{dst}, 0xffff0000, v{src}")
                else: a(f"v_lshlrev_b32 v{dst}, 16, v{src}")
    e.wait_vm("X0")
    for f in f_reads(0): f()
    e.wait_vm("X1")
    stamp(6, 3)
    for f in f_reads(1): f()

    cm("---- first pass: output rows 0 and 1, weights stream LDS -> registers ----")
    free = list(range(NQ))
    def take(): return vAcc + 4*free.pop(0)
    def give(r): free.append((r - vAcc)//4)
    acc = [[take() for t in range(6)] for tile in range(2)]
    LAG = opt.get("lag", 5)
    def rd_half(f, half):
        q, t = divmod(f, 6); p, h = divmod(t, 2)
        off = (q % 6)*CH + half*768 + 64*p + 8*h
        e.lds(f"R{f}", f"ds_read_b64_tr_b16 {whalf(f, half)}, v{vW + q//6} offset:{off}")
    def mf(d, f, bfr, c):
        a(f"v_mfma_f32_16x16x32_bf16 {q4(d)}, {wfrag(f)}, {bfr}, {q4(c)}")
    ex = {}
    def atg(G, f): ex.setdefault(G, []).append(f)
    for item in str(opt.get("inp", "W4@0,W5@3,X3@6,X4@10,E1@14")).split(","):
        if not item: continue
        name, pos = item.split("@"); pos = int(pos)
        L = grp(name)
        atg(2*pos, L[0])
        step = opt.get("pace", 1)
        for k, f in enumerate(L[1:]): atg(2*(pos + k*step) + 1, f)
    f2 = opt.get("f2pos", 29)
    atg(2*f2, lambda: e.wait_vm("X2"))
    for i, f in enumerate(f_reads(2)): atg(2*(f2+1+i) + 1, f)
    f3 = opt.get("f3pos", 60)
    atg(2*f3, lambda: e.wait_vm("X3"))
    for i, f in enumerate(f_reads(3)): atg(2*(f3+1+i) + 1, f)
    def stage_gate(n):
        if n < 72 and n % 12 == 0:
            e.wait_vm(f"W{n//12}")
            a("s_barrier")
            if n == 0: stamp(3); stamp(7, 3)
            stamp(1 + n//12, 2); stamp(n//12, 7)
    if opt.get("dsleep") and opt.get("dstile", 2) == 0:
        a("s_bitcmp1_b32 s2, %d" % opt.get("dsbit", 2))
        a("s_cbranch_scc%d L_nosleep" % (1 if opt.get("dsinv") else 0))
        a("s_sleep %d" % opt["dsleep"])
        e.lab("L_nosleep")
    for n in range(LAG):
        stage_gate(n)
        rd_half(n, 0); rd_half(n, 1)
    for m in range(72):
        n = m + LAG
        q, t = divmod(m, 6); aa, b, ks = qabk(q)
        if m == 0: e.wait_lg("F1")
        if m == 36: e.wait_lg("F2")
        e.wait_lg(f"R{m}")
        if m == 0: stamp(4)
        for tile in range(2):
            row = tile + (1 - aa)
            c = (vBias + 4*t) if q == 0 else acc[tile][t]
            mf(acc[tile][t], m, Ffrag(row, b, ks), c)
            if tile == 0: stage_gate(n)
            if n < 72: rd_half(n, tile)
            for f in ex.get(2*m + tile, []): f()
    assert 3*NDT*4096 <= 55000
    stamp(5); stamp(7, 2); stamp(6, 7); cstamp(0)

    pkfree = [vPk + 4*i for i in range(NPK)]
    rbfree = [vRb + 4*i for i in range(NRB)]
    def epi_ops(accq, p, tile):
        A, B = accq
        lt = tile < NDT
        box = {}
        cv = (lambda t: None) if opt.get("nocvt") else a
        def c0():
            box["pk"] = pkfree.pop(0)
            cv(f"v_cvt_pk_bf16_f32 v{box['pk']}, v{A}, v{A+1}")
        def c1(): cv(f"v_cvt_pk_bf16_f32 v{box['pk']+1}, v{A+2}, v{A+3}"); give(A)
        def c2(): cv(f"v_cvt_pk_bf16_f32 v{box['pk']+2}, v{B}, v{B+1}")
        def c3(): cv(f"v_cvt_pk_bf16_f32 v{box['pk']+3}, v{B+2}, v{B+3}"); give(B)
        off = f" offset:{64*p}" if p else ""
        fl = (" " + stf) if stf else ""
        slot = 3*tile + p
        def wr():
            e.lds(f"T{slot}w", f"ds_write_b128 v{vTw}, {q4(box['pk'])} offset:{slot*1024}")
            pkfree.append(box["pk"])
        def rd():
            box["rb"] = rbfree.pop(0)
            e.lds(f"T{slot}r", f"ds_read_b128 {q4(box['rb'])}, v{vTr} offset:{slot*1024}")
        def wt(): e.wait_lg(f"T{slot}r")
        def st():
            src = box["rb"] if lt else box["pk"]
            so = (s_o01 + tile) if tile < NDT else (s_or + tile % 4)
            if opt.get("xp192"):
                e.vmem("ST", f"buffer_store_dwordx4 {q4(src)}, v{vP+p}, s[{sO}:{sO+3}], s{so} offen{fl}")
            elif opt.get("cdata"):
                e.vmem("ST", f"buffer_store_dwordx4 {q4(vBias)}, v{vO2 if lt else vO}, s[{sO}:{sO+3}], s{so} offen{off}{fl}")
            elif not opt.get("nost"):
                e.vmem("ST", f"buffer_store_dwordx4 {q4(src)}, v{vO2 if lt else vO}, s[{sO}:{sO+3}], s{so} offen{off}{fl}")
            (rbfree if lt else pkfree).append(src)
        if lt: return [c0, c1], [c2, c3], [wr, rd, wt, st]
        return [c0, c1], [c2, c3], [st]
    SPREAD = ints(opt.get("spread", {2: "2,3,4,5,6,7", 3: "3,4,5,6,7,8,9,10,11", 4: "4,4,5,6,6,7,8,8,9,10,10,11"}[NDT]))
    deferred = {}
    def defer(k, fin, minpos=None):
        tl_ = SPREAD[k]
        nth = len([1 for kk in range(k) if SPREAD[kk] == tl_])
        p0 = ints(opt.get("defpos", "40,16,64"))[nth]
        if minpos is not None: p0 = max(p0, minpos)
        deferred.setdefault(tl_, []).extend([(p0, fin[1]), (p0 + 6, fin[2]), (p0 + 7, fin[3])])
    carry = []
    for tile in range(2):
        for p in range(3):
            c01, c23, fin = epi_ops((acc[tile][2*p], acc[tile][2*p+1]), p, tile)
            carry.append((c01 + c23, fin))
    def steady(i, carry_sched, force=None, record=None, bunch=None):
        cm(f"---- output row {i} ----")
        ex = {}
        def put(n, f): ex.setdefault(n, []).append(f)
        for n, L in carry_sched.items():
            for f in L: put(n, f)
        for n, f in deferred.get(i, []): put(n, f)
        put(1, lambda: a(f"s_add_u32 s{s_or + i % 4}, s{s_or + (i-1) % 4}, {OROW2}"))
        if i == 2: put(4, lambda: e.wait_lg("F3"))
        if i == opt.get("tewt", -1): put(opt.get("tewpos", 0), lambda: e.wait_vm("TE"))
        r = i + 2
        if i + 3 <= 13 and not opt.get("nodma") and bunch != "dma":
            dp = ints(opt.get("dma2", "50,55,60,65")) if i == 2 else ints(opt.get("dmapos", "2,4,26,28"))
            if isinstance(bunch, list):
                for k in range(2, 4): put(dp[k], bunch[1+k])
            else:
                L = xrow_dma(i + 3)
                put(dp[0] - 1, L[0])
                for k in range(4): put(dp[k], L[1+k])
        if r <= 13 and bunch != "F":
            if not opt.get("nodma") or r < 5: put(opt.get("xwpos", 40), lambda: e.wait_vm(f"X{r}"))
            rp = ints(opt.get("rdpos", "41,42,43,50,51,52"))
            for k, f in enumerate(f_reads(r)): put(rp[k], f)
            put(66, lambda: e.wait_lg(f"F{r}"))
        accs = []
        nxt = {}
        for t in range(6):
            if force is None: d = take()
            else:
                d = force[t]; free.remove((d - vAcc)//4)
            accs.append(d)
            if record is not None: record.append(d)
            for q in range(12):
                n = 12*t + q
                aa, b, ks = qabk(q)
                row = i + (1 - aa)
                c = (vBias + 4*t) if q == 0 else d
                if PM == 6 and i == opt.get("ptile", 2) and q == 0: stamp(t, 6)
                if PM == 6 and i == opt.get("ptile", 2) + 1 and n == 0: stamp(6, 6)
                if PM == 6 and i == opt.get("ptile", 2) + 1 and n == 36: stamp(7, 6)
                mf(d, q*6 + t, Ffrag(row, b, ks), c)
                for f in ex.get(n, []): f()
            if t % 2 == 1:
                p = t//2
                c01, c23, fin = epi_ops((accs[t-1], accs[t]), p, i)
                base = 12*t + 12
                so_ = ints(opt.get("stoff", "10,10,10"))[p] if i >= NDT else 10
                tgt = [(base + 0, c01[0]), (base + 1, c01[1]), (base + 8, c23[0]), (base + 9, c23[1]), (base + so_, fin[0])]
                if i < NDT and force is None:
                    assert SPREAD[3*i + p] > i
                    defer(3*i + p, fin)
                for n_, f in tgt:
                    if n_ < 72: put(n_, f)
                    else: nxt.setdefault(n_ - 72, []).append(f)
        return nxt
    cs = {}
    cstep = opt.get("cstep", 6)
    for k, (cv_, fin) in enumerate(carry):
        b0 = cstep*k
        for j, f in enumerate(cv_): cs.setdefault(b0 + j, []).append(f)
        cs.setdefault(b0 + 4, []).append(fin[0])
        defer(k, fin, b0 + 6 if SPREAD[k] == 2 else None)
    def tail(em_carry):
        cm("---- last quarter of the last row ----")
        a("s_nop 7")
        for n in sorted(em_carry):
            for f in em_carry[n]: f()
    def prof_dump(em):
        if not T0: return
        b = em.a
        b("s_waitcnt vmcnt(0)")
        if PM == 1: b(f"s_memrealtime s[{70+14}:{71+14}]")
        b("s_waitcnt lgkmcnt(0)")
        b("s_load_dwordx2 s[4:5], s[0:1], 40")
        b("s_waitcnt lgkmcnt(0)")
        b("s_mov_b32 s8, s4"); b("s_and_b32 s9, s5, 0xffff"); b("s_mov_b32 s10, 0x10000000"); b("s_mov_b32 s11, 0x20000")
        b("v_mov_b32 v1, 0")
        for i in range(8): b(f"v_writelane_b32 v1, s{70+2*i}, {i}")
        b(f"v_writelane_b32 v1, s{s_R}, 14")
        b("s_sub_u32 s86, s88, s86")
        b(f"v_writelane_b32 v1, s86, 13")
        b("s_getreg_b32 s87, hwreg(HW_REG_XCC_ID)")
        b(f"v_writelane_b32 v1, s87, 12")
        b(f"s_lshl_b32 s6, s2, 2"); b(f"s_add_u32 s6, s6, s{s_w}"); b("s_lshl_b32 s6, s6, 6")
        b("v_lshlrev_b32 v3, 2, v0")
        b("v_cmp_gt_u32 vcc, 16, v0")
        b("s_and_saveexec_b64 s[12:13], vcc")
        b("buffer_store_dword v1, v3, s[8:11], s6 offen")
        b("s_waitcnt vmcnt(0)")
    nxt = cs
    saved = None
    STAG = opt.get("stag", 1)
    VERS = {}; vstate = {}; vrec = {}
    if STAG >= 1:
        VERS[2] = ("carry", opt.get("bit2", "x"), 0, ["half of the workgroups convert the first two rows before row 2 instead of inside it:",
                                   "this de-synchronises the write bursts of neighbouring CUs and dies"])
    if STAG >= 2: VERS[3] = ("dma", opt.get("bit3", 6), 1, [])
    if STAG >= 3: VERS[opt.get("tile4", 5)] = (opt.get("kind4", "half"), opt.get("bit4", 5), 1, [])
    tl = ints(opt.get("tl", "2,3,4,5,6,8,10"))
    for i in range(2, 13):
        if i == 12:
            a(f"s_cmp_eq_u32 s{s_R}, 12")
            a("s_cbranch_scc1 L_tail12")
            saved = (e.clone(), dict(nxt), list(pkfree), list(rbfree))
        if opt.get("dvar") and i == opt.get("dstile", 2):
            mode = opt["dvar"]
            if mode == "x8": a("s_and_b32 s90, s2, 7")
            elif mode == "x8r":
                a("s_and_b32 s90, s2, 7"); a("s_sub_u32 s90, 7, s90")
            elif mode == "ph": a("s_bfe_u32 s90, s2, 0x20003")
            elif mode == "w": a(f"s_mov_b32 s90, s{s_w}")
            elif mode == "xw":
                a("s_and_b32 s90, s2, 1"); a("s_lshl_b32 s90, s90, 2"); a(f"s_add_u32 s90, s90, s{s_w}")
            elif mode == "g8": a("s_lshr_b32 s90, s2, 5")
            elif mode == "k4":
                a("s_and_b32 s90, s2, 1"); a("s_xor_b32 s90, s90, 1"); a("s_lshl_b32 s90, s90, 1")
                a("s_bfe_u32 s91, s2, 0x10005"); a("s_add_u32 s90, s90, s91")
            elif mode in ("ab", "abx"):
                a("s_bfe_u32 s90, s2, 0x10005")
                if mode == "abx":
                    a("s_and_b32 s91, s2, 1"); a("s_xor_b32 s90, s90, s91")
                a("s_mul_i32 s90, s90, 3")
                a("s_bfe_u32 s91, s2, 0x10006"); a("s_lshl_b32 s91, s91, 2"); a("s_add_u32 s90, s90, s91")
            elif mode == "g4":
                a("s_bfe_u32 s90, s2, 0x20005")
            elif mode == "g2":
                a("s_bfe_u32 s90, s2, 0x10005")
            elif mode == "p4":
                a("s_bfe_u32 s90, s2, 0x20003")
            e.lab("L_dv")
            a("s_cmp_eq_u32 s90, 0")
            a("s_cbranch_scc1 L_dvdone")
            a("s_sleep %d" % opt.get("dunit", 1))
            a("s_sub_u32 s90, s90, 1")
            a("s_branch L_dv")
            e.lab("L_dvdone")
        if opt.get("dsleep") and i == opt.get("dstile", 2):
            a("s_bitcmp1_b32 s2, %d" % opt.get("dsbit", 2))
            a("s_cbranch_scc%d L_nosleep" % (1 if opt.get("dsinv") else 0))
            a("s_sleep %d" % opt["dsleep"])
            e.lab("L_nosleep")
        if i in tl: stamp(1 + tl.index(i), 5)
        if i == 3: stamp(7, 7)
        if i in VERS:
            kind, bit, scc, why = VERS[i]
            if i - 1 in VERS: e.lab(f"L_row{i}")
            for w_ in why: cm(w_)
            if bit == "x":
                a(f"s_lshr_b32 s{s_t0}, s2, 5")
                a(f"s_xor_b32 s{s_t0}, s{s_t0}, s2")
                a(f"s_bitcmp1_b32 s{s_t0}, 0")
            else:
                a(f"s_bitcmp1_b32 s2, {bit}")
            a(f"s_cbranch_scc{scc} L_row{i}_alt")
            vstate[i] = (e.clone(), list(free), list(pkfree), list(rbfree), dict(nxt))
            vrec[i] = []
            nxt = steady(i, nxt, record=vrec[i])
            if i + 1 not in VERS: e.lab(f"L_row{i+1}")
        else:
            nxt = steady(i, nxt)
    stamp(6); cstamp(1)
    tail(nxt)
    prof_dump(e)
    a("s_endpgm")
    em0, nx0, pk0, rb0 = saved
    L_main = e.L
    e.L = []; e.vm = em0.vm; e.lg = em0.lg; e.vm_done = em0.vm_done; e.lg_done = em0.lg_done
    pkfree[:] = pk0; rbfree[:] = rb0
    e.lab("L_tail12")
    stamp(6); cstamp(1)
    tail(nx0)
    prof_dump(e)
    e.lab("L_end")
    a("s_endpgm")
    for i in sorted(VERS):
        kind = VERS[i][0]
        emB, frB, pkB, rbB, csB = vstate[i]
        e.vm = emB.vm; e.lg = emB.lg; e.vm_done = emB.vm_done; e.lg_done = emB.lg_done
        free[:] = frB; pkfree[:] = pkB; rbfree[:] = rbB
        e.lab(f"L_row{i}_alt")
        if kind == "carry":
            for n in sorted(csB):
                for f in csB[n]: f()
            steady(i, {}, force=vrec[i])
        elif kind == "dma":
            L = xrow_dma(i + 3)
            seq = [f for n in sorted(csB) for f in csB[n]]
            L[0](); seq[0]()
            for f in L[1:]: f()
            for f in seq[1:]: f()
            steady(i, {}, force=vrec[i], bunch="dma")
        elif kind == "half":
            L = xrow_dma(i + 3)
            seq = [f for n in sorted(csB) for f in csB[n]]
            L[0](); seq[0](); L[1](); L[2](); seq[1]()
            a("s_nop 0");
            for f in seq[2:]: f()
            steady(i, {}, force=vrec[i], bunch=L)
        elif kind == "same":
            steady(i, csB, force=vrec[i])
        elif kind == "epi":
            seq = [f for n in sorted(csB) for f in csB[n]]
            seq[0](); seq[1]()
            a("s_nop 3")
            for f in seq[2:]: f()
            steady(i, {}, force=vrec[i])
        elif kind == "F":
            e.wait_vm(f"X{i+2}")
            for f in f_reads(i + 2): f()
            e.wait_lg(f"F{i+2}")
            steady(i, csB, force=vrec[i], bunch="F")
        a(f"s_branch L_row{i+1}")
    e.lab("L_codeend")
    body = "\n".join(L_main + e.L)
    hdr = f"""; ConvTranspose2d(k=4, stride 2, pad 1), NHWC bf16: x[224][224][96], w[4][4][96][96], b[96] -> out[448][448][96]
; out[2m+py][2n+px] = b + sum over a,b in {{0,1}} of x[m+py-a][n+px-b] . w[1-py+2a][1-px+2b]   (4 phases, K = 4*96)
; One workgroup = one phase (py,px); the 4 taps (96x96 each) live in registers (288 per lane) as MFMA A operands.
; @launch grid=(256,1,1) block=(256,1,1) lds={LDS}
.amdgcn_target "amdgcn-amd-amdhsa--gfx950"
.text
.globl {KNAME}
.p2align 8
.type {KNAME},@function
{KNAME}:
{body}
.section .rodata,"a"
.p2align 6
.amdhsa_kernel {KNAME}
  .amdhsa_next_free_vgpr 512
  .amdhsa_next_free_sgpr 100
  .amdhsa_accum_offset 256
  .amdhsa_group_segment_fixed_size 0
  .amdhsa_kernarg_size 48
  .amdhsa_user_sgpr_count 2
  .amdhsa_user_sgpr_kernarg_segment_ptr 1
  .amdhsa_system_sgpr_workgroup_id_x 1
.end_amdhsa_kernel
"""
    return hdr

if __name__ == "__main__":
    import mk
    out = sys.argv[1] if len(sys.argv) > 1 else "final.s"
    opt = {}
    for x in sys.argv[2:]:
        k, v = x.split("=")
        opt[k] = int(v) if v.lstrip("-").isdigit() else v
    open(out, "w").write(gen(opt))
    print(mk.build(out))
```

```python
import sys
KNAME = "standalone__transposed_strided__vision_kernel"
XB = 9633792; WB = 294912; OB = 38535168
XROW = 224*192
OROW2 = 2*448*192
CH = 6160
XBASE = 73984
NS = 5
SLOT = 4096
LDS = XBASE + 4*NS*SLOT

class Em:
    def __init__(s):
        s.L = []; s.vm = []; s.lg = []; s.vm_done = 0; s.lg_done = 0
    def clone(s):
        e = Em(); e.vm = list(s.vm); e.lg = list(s.lg); e.vm_done = s.vm_done; e.lg_done = s.lg_done
        return e
    def a(s, t): s.L.append("    " + t)
    def c(s, t): s.L.append("    ; " + t)
    def lab(s, t): s.L.append(t + ":")
    def vmem(s, tag, t): s.a(t); s.vm.append(tag)
    def lds(s, tag, t): s.a(t); s.lg.append(tag)
    def wait_vm(s, tag):
        idx = max(i for i, x in enumerate(s.vm) if x == tag) + 1
        if idx <= s.vm_done: return
        n = len(s.vm) - idx
        assert n <= 63
        s.a(f"s_waitcnt vmcnt({n})"); s.vm_done = idx
    def wait_lg(s, tag):
        idx = max(i for i, x in enumerate(s.lg) if x == tag) + 1
        if idx <= s.lg_done: return
        n = len(s.lg) - idx
        assert n <= 15, (n, tag)
        s.a(f"s_waitcnt lgkmcnt({n})"); s.lg_done = idx

def ints(x): return [int(v) for v in str(x).split(",")]

def gen(opt):
    stf = opt.get("stflags", "sc1")
    T0 = opt.get("prof", False)
    PM = opt.get("pm", 1)
    NDT = opt.get("ndt", 3)
    e = Em(); a = e.a; cm = e.c
    V = 0
    def alloc(n, al=1):
        nonlocal V
        V = (V + al - 1)//al*al
        r = V; V += n; return r
    v_tid = alloc(1)
    vT = alloc(5)
    vPf = alloc(1)
    vX = alloc(4)
    vWd = alloc(3)
    vB = alloc(2)
    vW = alloc(2)
    vO = alloc(1)
    vBi = alloc(1)
    vO2 = alloc(1)
    vD = alloc(1)
    vE = alloc(2)
    vER = alloc(2)
    vP = alloc(3)
    vTw = alloc(1, 2); vTr = alloc(1)
    vF = [alloc(24, 4) for _ in range(3)]
    NQ = 14
    vAcc = alloc(4*NQ, 4)
    vBias = alloc(24, 4)
    NPK = 4
    vPk = alloc(4*NPK, 4)
    NRB = 3
    vRb = alloc(4*NRB, 4)
    vWv = alloc(32, 4)
    assert V <= 256, V
    def wfrag(f):
        return (f"a[{4*f}:{4*f+3}]" if f < 64 else f"v[{vWv+4*(f-64)}:{vWv+4*(f-64)+3}]")
    def whalf(f, h):
        if f < 64: return f"a[{4*f+2*h}:{4*f+2*h+1}]"
        r = vWv+4*(f-64)+2*h
        return f"v[{r}:{r+1}]"
    def Ffrag(row, b, ks):
        r = vF[row % 3] + 4*(b*3+ks)
        return f"v[{r}:{r+3}]"
    def q4(r): return f"v[{r}:{r+3}]"
    sX, sX2, sW, sBs, sO = 12, 16, 20, 24, 28
    s_w, s_wh, s_o, s_px, s_py, s_strip, s_band, s_m0, s_R = 32, 33, 34, 35, 36, 37, 38, 39, 40
    s_t0, s_t1, s_t2, s_t3 = 41, 42, 43, 44
    s_xrow, s_iy, s_xb, s_pb, s_wmb = 45, 46, 47, 48, 49
    s_wo = 50
    s_or = 56
    s_mk = 60
    s_pc = 66
    s_o01 = 92
    s_e0, s_e1, s_iw = 96, 97, 98
    def stamp(i, pm=1):
        if T0 and pm == PM: a(f"s_mem{'time' if pm >= 6 else 'realtime'} s[{70+2*i}:{71+2*i}]")
    def cstamp(i):
        if T0: a(f"s_memtime s[{86+2*i}:{87+2*i}]")
    def qabk(q):
        aa = 1 - q//6; b = (q % 6)//3; ks = q % 3
        return aa, b, ks
    def wconst(q):
        aa, b, ks = qabk(q)
        return (8*aa + 2*b)*18432 + ks*6144
    t1, t2, t3, t4, t5 = [vT+i for i in range(5)]
    EROWS = [tuple(int(v) for v in x.split(":")) for x in str(opt.get("erows", "-1:4,5:9")).split(",")]

    cm("---- decode workgroup / wave, start the L2 prefetches as early as possible ----")
    for pm in (1, 2, 3, 5): stamp(0, pm)
    a("s_cmp_ge_u32 s2, 256")
    a("s_cbranch_scc1 L_end")
    a("s_load_dwordx4 s[4:7], s[0:1], 0")
    a("s_load_dwordx4 s[8:11], s[0:1], 16")
    a(f"v_lshrrev_b32 v{t4}, 6, v0")
    a(f"s_getpc_b64 s[{s_pc}:{s_pc+1}]")
    e.lab("L_pc")
    a(f"v_readfirstlane_b32 s{s_w}, v{t4}")
    a(f"v_and_b32 v0, 63, v0")
    assert vTw % 2 == 0 and vTr == vTw + 1
    a(f"s_lshr_b32 s{s_iw}, s2, 3")
    a(f"s_lshl2_add_u32 s{s_iw}, s{s_iw}, s{s_w}")
    cm("each wave pulls two 128-byte lines of this kernel's code into L2")
    a(f"s_lshl_b32 s{s_t0}, s{s_iw}, 7")
    a(f"v_lshrrev_b32 v{t1}, 5, v0")
    a(f"v_lshlrev_b32 v{t1}, 14, v{t1}")
    a(f"v_add_u32 v{t1}, s{s_t0}, v{t1}")
    a(f"v_min_u32 v{t1}, L_codeend-L_pc-4, v{t1}")
    a(f"v_mov_b32 v{vTw+1}, s{s_pc+1}")
    a(f"v_add_co_u32 v{vTw}, vcc, s{s_pc}, v{t1}")
    LUT = opt.get("slotlut", "0x37652104")
    if LUT != "none":
        a(f"s_and_b32 s{s_t0}, s2, 7")
        a(f"s_lshl_b32 s{s_t0}, s{s_t0}, 2")
        a(f"s_or_b32 s{s_t0}, s{s_t0}, 0x30000")
        a(f"s_bfe_u32 s{s_t0}, {LUT}, s{s_t0}")
    else:
        a(f"s_and_b32 s{s_t0}, s2, 7")
    a(f"s_lshr_b32 s{s_t1}, s2, 5")
    a(f"v_addc_co_u32 v{vTw+1}, vcc, 0, v{vTw+1}, vcc")
    e.vmem("PF", f"global_load_dword v{vPf}, v[{vTw}:{vTw+1}], off")
    cm("unit group c: 13-row groups (c < 28) on slots 0..3: c = 7*slot + grp (grp < 7), c = 60 + slot (grp == 7);")
    cm("slots 4..7: c = 28 + 8*(slot-4) + grp.  c == 63 has no work.")
    a(f"s_mul_i32 s{s_t2}, s{s_t0}, 7")
    a(f"s_add_u32 s{s_t2}, s{s_t2}, s{s_t1}")
    a(f"s_add_u32 s{s_t3}, s{s_t0}, 60")
    a(f"s_cmp_eq_u32 s{s_t1}, 7")
    a(f"s_cselect_b32 s{s_t2}, s{s_t3}, s{s_t2}")
    a(f"s_lshl3_add_u32 s{s_t3}, s{s_t0}, s{s_t1}")
    a(f"s_sub_u32 s{s_t3}, s{s_t3}, 4")
    a(f"s_cmp_lt_u32 s{s_t0}, 4")
    a(f"s_cselect_b32 s{s_t1}, s{s_t2}, s{s_t3}")
    a(f"s_cmp_ge_u32 s{s_t1}, 63")
    a("s_cbranch_scc1 L_end")
    a(f"s_bfe_u32 s{s_px}, s2, 0x10003")
    a(f"s_bfe_u32 s{s_py}, s2, 0x10004")
    a(f"s_lshl2_add_u32 s{s_t1}, s{s_t1}, s{s_w}")
    a(f"s_mul_i32 s{s_band}, s{s_t1}, 4682")
    a(f"s_lshr_b32 s{s_band}, s{s_band}, 16")
    a(f"s_mul_i32 s{s_t0}, s{s_band}, 14")
    a(f"s_sub_u32 s{s_strip}, s{s_t1}, s{s_t0}")
    a(f"s_min_u32 s{s_t0}, s{s_band}, 8")
    a(f"s_mul_i32 s{s_m0}, s{s_band}, 12")
    a(f"s_add_u32 s{s_m0}, s{s_m0}, s{s_t0}")
    cm("x L2 prefetch: the 4 phase workgroups of a group each touch 7 of the 28 lines of a row segment")
    a(f"v_mul_u32_u24 v{vER}, 9363, v0")
    a(f"s_lshl1_add_u32 s{s_t0}, s{s_py}, s{s_px}")
    a(f"v_lshrrev_b32 v{vER}, 16, v{vER}")
    a(f"s_mul_i32 s{s_t0}, s{s_t0}, 7")
    a(f"v_mul_u32_u24 v{t5}, 7, v{vER}")
    a(f"s_mul_i32 s{s_t1}, s{s_strip}, 24")
    a(f"v_sub_u32 v{t5}, v0, v{t5}")
    a(f"s_add_u32 s{s_t0}, s{s_t0}, s{s_t1}")
    a(f"s_sub_u32 s{s_t0}, s{s_t0}, 2")
    a(f"v_add_u32 v{t5}, s{s_t0}, v{t5}")
    a(f"v_max_i32 v{t5}, 0, v{t5}")
    a(f"v_lshlrev_b32 v{vER+1}, 7, v{t5}")
    a(f"s_movk_i32 s{s_e0}, 223")
    a(f"s_mov_b32 s{s_e1}, {XROW}")
    def e_addr(k):
        a(f"s_add_i32 s{s_t1}, s{s_m0}, {EROWS[k][0]}")
        a(f"v_add_u32 v{t5}, s{s_t1}, v{vER}")
        a(f"v_med3_i32 v{t5}, v{t5}, 0, s{s_e0}")
        a(f"v_mad_u32_u24 v{vE+k}, v{t5}, s{s_e1}, v{vER+1}")
    e_addr(0)
    cm("weight L2 prefetch: 18 lines per wave")
    a(f"s_mul_i32 s{s_t0}, s{s_iw}, {18*128}")
    a(f"v_lshlrev_b32 v{t4}, 7, v0")
    a(f"v_add_u32 v{vD}, s{s_t0}, v{t4}")
    for s_, size in ((sX, XB), (sW, WB)):
        a(f"s_mov_b32 s{s_+2}, {size}")
        a(f"s_mov_b32 s{s_+3}, 0x20000")
    a("s_waitcnt lgkmcnt(0)")
    stamp(1); stamp(1, 3)
    for s_, p in ((sX, 4), (sW, 6)):
        a(f"s_mov_b32 s{s_}, s{p}")
        a(f"s_and_b32 s{s_+1}, s{p+1}, 0xffff")
    def touch(tag, nl, vaddr, srd):
        a(f"s_mov_b32 exec_lo, {hex((1 << min(nl, 32)) - 1)}")
        a(f"s_mov_b32 exec_hi, {hex((1 << max(nl - 32, 0)) - 1)}")
        e.vmem(tag, f"buffer_load_dword v{vPf}, v{vaddr}, s[{srd}:{srd+3}], 0 offen")
        a("s_mov_b64 exec, -1")
    if opt.get("dfirst"): touch("TD", 18, vD, sW)
    if not opt.get("noe0"): touch("TE", 7*EROWS[0][1], vE, sX)
    if not opt.get("dfirst"): touch("TD", 18, vD, sW)
    stamp(2, 3)

    cm("---- addresses of the LDS-DMA loads ----")
    for s_, p, size in ((sX2, 4, None), (sBs, 8, 192), (sO, 10, OB)):
        a(f"s_mov_b32 s{s_}, s{p}")
        a(f"s_and_b32 s{s_+1}, s{p+1}, 0xffff")
        if size: a(f"s_mov_b32 s{s_+2}, {size}")
        a(f"s_mov_b32 s{s_+3}, 0x20000")
    a(f"s_add_u32 s{s_iy}, s{s_m0}, s{s_py}")
    a(f"s_sub_u32 s{s_iy}, s{s_iy}, 1")
    a(f"s_mul_i32 s{s_xrow}, s{s_iy}, {XROW}")
    a(f"s_lshl4_add_u32 s{s_t0}, s{s_strip}, s{s_px}")
    a(f"s_sub_u32 s{s_t1}, s{s_t0}, 1")
    a(f"s_mulk_i32 s{s_t1}, 192")
    a(f"s_cmp_eq_u32 s{s_t0}, 0")
    a(f"s_cselect_b32 s{s_t2}, 12, 0")
    a(f"s_cmpk_gt_u32 s{s_t0}, 208")
    a(f"s_cselect_b32 s{s_t3}, 0, 12")
    a(f"s_mov_b32 s{s_mk}, 0")
    a(f"s_mov_b32 s{s_mk+1}, 0xffff0000")
    a(f"s_mov_b32 s{s_mk+2}, -1")
    a(f"s_mov_b32 s{s_mk+3}, 0")
    a(f"s_mov_b32 s{s_mk+4}, 0xffff0000")
    a(f"s_mov_b32 s{s_mk+5}, -1")
    a(f"v_lshlrev_b32 v{vWd}, 4, v0")
    a(f"v_xor_b32 v{t1}, 32, v{vWd}")
    a(f"v_add_u32 v{t1}, s{s_t1}, v{t1}")
    a(f"v_add_u32 v{vX+3}, s{s_t1}, v{vWd}")
    a(f"v_bfrev_b32 v{t3}, 1")
    a(f"v_cmp_gt_u32 vcc, s{s_t2}, v0")
    a(f"v_cndmask_b32 v{vX}, v{vX+3}, v{t1}, s[{s_mk}:{s_mk+1}]")
    a(f"v_cndmask_b32 v{vX+1}, v{vX+3}, v{t1}, s[{s_mk+2}:{s_mk+3}]")
    a(f"v_cndmask_b32 v{vX}, v{vX}, v{t3}, vcc")
    a(f"v_cmp_le_u32 vcc, s{s_t3}, v0")
    a(f"v_cndmask_b32 v{vX+2}, v{vX+3}, v{t1}, s[{s_mk+4}:{s_mk+5}]")
    a(f"v_lshrrev_b32 v{t2}, 5, v0")
    a(f"v_cndmask_b32 v{vX+3}, v{vX+3}, v{t3}, vcc")
    a(f"v_mul_u32_u24 v{t2}, 1536, v{t2}")
    a(f"v_add_u32 v{vWd+1}, v{vWd}, v{t2}")
    a(f"v_add_u32 v{vWd+2}, 1536, v{vWd}")
    a(f"s_lshr_b32 s{s_wh}, s{s_w}, 1")
    a(f"s_and_b32 s{s_o}, s{s_w}, 1")
    a(f"s_lshl2_add_u32 s{s_t0}, s{s_py}, s{s_px}")
    a(f"s_sub_u32 s{s_t0}, 5, s{s_t0}")
    a(f"s_mul_i32 s{s_pb}, s{s_t0}, 18432")
    a(f"s_mul_i32 s{s_t0}, s{s_o}, 1536")
    a(f"s_add_u32 s{s_pb}, s{s_pb}, s{s_t0}")
    a(f"s_mul_i32 s{s_t2}, s{s_o}, 3080")
    a(f"s_mul_i32 s{s_t3}, s{s_wh}, {CH}")
    a(f"s_add_u32 s{s_wmb}, s{s_t2}, s{s_t3}")
    a(f"s_mul_i32 s{s_xb}, s{s_w}, {NS*SLOT}")
    a(f"s_add_u32 s{s_xb}, s{s_xb}, {XBASE}")
    def wo_calc(j):
        c0, c1 = wconst(2*j), wconst(2*j+1)
        a(f"s_cmp_eq_u32 s{s_wh}, 0")
        a(f"s_mov_b32 s{s_t0}, {c1}")
        a(f"s_cselect_b32 s{s_t0}, {c0}, s{s_t0}")
        a(f"s_add_u32 s{s_wo+j}, s{s_t0}, s{s_pb}")
    a(f"v_lshrrev_b32 v{t2}, 4, v0")
    a(f"v_and_b32 v{t3}, 15, v0")
    a(f"v_lshlrev_b32 v{vBi}, 4, v{t2}")

    def xrow_dma(r):
        L = []
        chk = r in (0, 12, 13)
        srd = sX2 if chk else sX
        def pre():
            if chk:
                a(f"s_cmp_lt_u32 s{s_iy}, 224")
                a(f"s_cselect_b32 s{sX2+2}, {XB}, 0")
            a(f"s_add_u32 m0, s{s_xb}, {(r % NS)*SLOT}")
        L.append(pre)
        for k in range(4):
            def ld(k=k):
                off = f" offset:{1024*k}" if k else ""
                if k == 3: a("s_mov_b64 exec, 0xfff")
                e.vmem(f"X{r}", f"buffer_load_dwordx4 v{vX+k}, s[{srd}:{srd+3}], s{s_xrow} offen{off} lds")
                if k == 3:
                    a("s_mov_b64 exec, -1")
                    a(f"s_add_u32 s{s_xrow}, s{s_xrow}, {XROW}")
                    if r in (0, 11, 12) or True: a(f"s_add_u32 s{s_iy}, s{s_iy}, 1")
            L.append(ld)
        return L
    def w_dma(j):
        L = []
        def pre():
            wo_calc(j)
            a(f"s_add_u32 m0, s{s_wmb}, {2*j*CH}")
        L.append(pre)
        for k in range(3):
            def ld(k=k):
                off = f" offset:{1024*k}" if k else ""
                e.vmem(f"W{j}", f"buffer_load_dwordx4 v{vWd+k}, s[{sW}:{sW+3}], s{s_wo+j} offen{off} lds")
            L.append(ld)
        return L
    vbt = vAcc
    def bi_loads():
        L = [lambda: None]
        for p in range(3):
            L.append(lambda p=p: e.vmem("BI", f"buffer_load_dwordx4 {q4(vbt+4*p)}, v{vBi}, s[{sBs}:{sBs+3}], 0 offen offset:{64*p}"))
        return L
    def grp(name):
        k, n = name[0], name[1:]
        if k == "X": return xrow_dma(int(n))
        if k == "W": return w_dma(int(n))
        if k == "B": return bi_loads()
        if k == "E": return [lambda: None, lambda: touch("TE", 7*EROWS[int(n)][1], vE + int(n), sX)]
        raise ValueError(name)
    def run(L):
        for i, f in enumerate(L):
            f()
            if i == 0: a("s_nop 0")
    def f_reads(r):
        L = []
        for b in range(2):
            for ks in range(3):
                def rd(b=b, ks=ks):
                    e.lds(f"F{r}", f"ds_read_b128 {Ffrag(r, b, ks)}, v{vB+b} offset:{(r % NS)*SLOT + 64*ks}")
                L.append(rd)
        return L
    def part_B():
        cm("---- LDS read addresses, store addresses ----")
        for b in range(2):
            a(f"v_add_u32 v{t4}, {1-b}, v{t3}")
            a(f"v_mul_u32_u24 v{t5}, 192, v{t4}")
            a(f"v_add_u32 v{t5}, v{t5}, v{vBi}")
            a(f"v_lshlrev_b32 v{t4}, 3, v{t4}")
            a(f"v_and_b32 v{t4}, 32, v{t4}")
            a(f"v_xor_b32 v{t5}, v{t5}, v{t4}")
            a(f"v_add_u32 v{vB+b}, s{s_xb}, v{t5}")
        a(f"v_and_b32 v{t4}, 1, v{t2}")
        a(f"v_mul_u32_u24 v{t4}, 3080, v{t4}")
        a(f"v_lshrrev_b32 v{t5}, 1, v{t2}")
        a(f"v_mul_u32_u24 v{t5}, 1536, v{t5}")
        a(f"v_add_u32 v{t4}, v{t4}, v{t5}")
        a(f"v_lshrrev_b32 v{t5}, 2, v{t3}")
        a(f"v_mul_u32_u24 v{t5}, 192, v{t5}")
        a(f"v_add_u32 v{t4}, v{t4}, v{t5}")
        a(f"v_and_b32 v{t5}, 3, v{t3}")
        a(f"v_lshlrev_b32 v{t5}, 4, v{t5}")
        a(f"v_add_u32 v{vW}, v{t4}, v{t5}")
        a(f"v_add_u32 v{vW+1}, {6*CH}, v{vW}")
        e_addr(1)
        a(f"s_lshl1_add_u32 s{s_t0}, s{s_m0}, s{s_py}")
        a(f"s_mulk_i32 s{s_t0}, 448")
        a(f"s_lshl_b32 s{s_t1}, s{s_strip}, 5")
        a(f"s_add_u32 s{s_t0}, s{s_t0}, s{s_t1}")
        a(f"s_add_u32 s{s_t0}, s{s_t0}, s{s_px}")
        a(f"s_mul_i32 s{s_o01}, s{s_t0}, 192")
        for k in range(1, NDT): a(f"s_add_u32 s{s_o01+k}, s{s_o01+k-1}, {OROW2}")
        a(f"s_add_u32 s{s_or+1}, s{s_o01}, {OROW2}")
        a(f"s_cmp_lt_u32 s{s_band}, 8")
        a(f"s_cselect_b32 s{s_R}, 13, 12")
        a(f"s_mul_i32 s{s_t0}, s{s_w}, {3*NDT*1024}")
        a(f"v_lshrrev_b32 v{t4}, 1, v{t3}")
        a(f"v_and_b32 v{t4}, 3, v{t4}")
        a(f"v_xor_b32 v{t4}, v{t4}, v{t2}")
        a(f"v_lshlrev_b32 v{t4}, 4, v{t4}")
        a(f"v_lshlrev_b32 v{t5}, 6, v{t3}")
        a(f"v_add3_u32 v{vTw}, v{t4}, v{t5}, s{s_t0}")
        a(f"v_lshrrev_b32 v{t1}, 2, v0")
        a(f"v_and_b32 v{t4}, 3, v0")
        a(f"v_mul_u32_u24 v{t5}, 384, v{t1}")
        a(f"v_lshl_add_u32 v{vO2}, v{t4}, 4, v{t5}")
        a(f"v_bfe_u32 v{t5}, v{t1}, 1, 2")
        a(f"v_xor_b32 v{t4}, v{t4}, v{t5}")
        a(f"v_lshlrev_b32 v{t4}, 4, v{t4}")
        a(f"v_lshlrev_b32 v{t5}, 6, v{t1}")
        a(f"v_add3_u32 v{vTr}, v{t4}, v{t5}, s{s_t0}")
        a(f"v_mul_u32_u24 v{t4}, 384, v{t3}")
        a(f"v_add_u32 v{vO}, v{t4}, v{vBi}")
        if opt.get("xp192"):
            for i in range(3):
                a(f"v_add_u32 v{t4}, {64*i}, v0")
                a(f"v_mul_u32_u24 v{t5}, 5462, v{t4}")
                a(f"v_lshrrev_b32 v{t5}, 16, v{t5}")
                a(f"v_mul_u32_u24 v{t1}, 12, v{t5}")
                a(f"v_sub_u32 v{t1}, v{t4}, v{t1}")
                a(f"v_mul_u32_u24 v{t5}, 384, v{t5}")
                a(f"v_lshlrev_b32 v{t1}, 4, v{t1}")
                a(f"v_add_u32 v{vP+i}, v{t5}, v{t1}")
    pre = str(opt.get("pre", "B,W0,X0,X1|W1,W2,X2,W3")).split("|")
    preA = pre[0].split(","); preB = pre[1].split(",") if len(pre) > 1 and pre[1] else []
    BF = opt.get("bfirst", 1)
    if BF: part_B()
    cm("---- first loads ----")
    for g_ in preA: run(grp(g_))
    stamp(3, 3)
    if not BF: part_B()
    for g_ in preB: run(grp(g_))
    stamp(4, 3)
    e.wait_vm("BI")
    stamp(5, 3)
    cm("bias -> fp32 accumulator initial values")
    for p in range(3):
        for h in range(2):
            for r in range(4):
                src = vbt + 4*p + (4*h+r)//2
                dst = vBias + 4*(2*p+h) + r
                if r & 1: a(f"v_and_b32 v{dst}, 0xffff0000, v{src}")
                else: a(f"v_lshlrev_b32 v{dst}, 16, v{src}")
    e.wait_vm("X0")
    for f in f_reads(0): f()
    e.wait_vm("X1")
    stamp(6, 3)
    for f in f_reads(1): f()

    cm("---- first pass: output rows 0 and 1, weights stream LDS -> registers ----")
    free = list(range(NQ))
    def take(): return vAcc + 4*free.pop(0)
    def give(r): free.append((r - vAcc)//4)
    acc = [[take() for t in range(6)] for tile in range(2)]
    LAG = opt.get("lag", 5)
    def rd_half(f, half):
        q, t = divmod(f, 6); p, h = divmod(t, 2)
        off = (q % 6)*CH + half*768 + 64*p + 8*h
        e.lds(f"R{f}", f"ds_read_b64_tr_b16 {whalf(f, half)}, v{vW + q//6} offset:{off}")
    def mf(d, f, bfr, c):
        a(f"v_mfma_f32_16x16x32_bf16 {q4(d)}, {wfrag(f)}, {bfr}, {q4(c)}")
    ex = {}
    def atg(G, f): ex.setdefault(G, []).append(f)
    for item in str(opt.get("inp", "W4@0,W5@3,X3@6,X4@10,E1@14")).split(","):
        if not item: continue
        name, pos = item.split("@"); pos = int(pos)
        L = grp(name)
        atg(2*pos, L[0])
        step = opt.get("pace", 1)
        for k, f in enumerate(L[1:]): atg(2*(pos + k*step) + 1, f)
    f2 = opt.get("f2pos", 29)
    atg(2*f2, lambda: e.wait_vm("X2"))
    for i, f in enumerate(f_reads(2)): atg(2*(f2+1+i) + 1, f)
    f3 = opt.get("f3pos", 60)
    atg(2*f3, lambda: e.wait_vm("X3"))
    for i, f in enumerate(f_reads(3)): atg(2*(f3+1+i) + 1, f)
    def stage_gate(n):
        if n < 72 and n % 12 == 0:
            e.wait_vm(f"W{n//12}")
            a("s_barrier")
            if n == 0: stamp(3); stamp(7, 3)
            stamp(1 + n//12, 2); stamp(n//12, 7)
    if opt.get("dsleep") and opt.get("dstile", 2) == 0:
        a("s_bitcmp1_b32 s2, %d" % opt.get("dsbit", 2))
        a("s_cbranch_scc%d L_nosleep" % (1 if opt.get("dsinv") else 0))
        a("s_sleep %d" % opt["dsleep"])
        e.lab("L_nosleep")
    for n in range(LAG):
        stage_gate(n)
        if n == 0: e.wait_lg("F1")
        rd_half(n, 0); rd_half(n, 1)
    for m in range(72):
        n = m + LAG
        q, t = divmod(m, 6); aa, b, ks = qabk(q)
        if m == 0: e.wait_lg("F1")
        if m == 36: e.wait_lg("F2")
        e.wait_lg(f"R{m}")
        if m == 0: stamp(4)
        for tile in range(2):
            row = tile + (1 - aa)
            c = (vBias + 4*t) if q == 0 else acc[tile][t]
            mf(acc[tile][t], m, Ffrag(row, b, ks), c)
            if tile == 0: stage_gate(n)
            if n < 72: rd_half(n, tile)
            for f in ex.get(2*m + tile, []): f()
    assert 3*NDT*4096 <= 55000
    stamp(5); stamp(7, 2); stamp(6, 7); cstamp(0)

    pkfree = [vPk + 4*i for i in range(NPK)]
    rbfree = [vRb + 4*i for i in range(NRB)]
    def epi_ops(accq, p, tile):
        A, B = accq
        lt = tile < NDT
        box = {}
        cv = (lambda t: None) if opt.get("nocvt") else a
        def c0():
            box["pk"] = pkfree.pop(0)
            cv(f"v_cvt_pk_bf16_f32 v{box['pk']}, v{A}, v{A+1}")
        def c1(): cv(f"v_cvt_pk_bf16_f32 v{box['pk']+1}, v{A+2}, v{A+3}"); give(A)
        def c2(): cv(f"v_cvt_pk_bf16_f32 v{box['pk']+2}, v{B}, v{B+1}")
        def c3(): cv(f"v_cvt_pk_bf16_f32 v{box['pk']+3}, v{B+2}, v{B+3}"); give(B)
        off = f" offset:{64*p}" if p else ""
        fl = (" " + stf) if stf else ""
        slot = 3*tile + p
        def wr():
            e.lds(f"T{slot}w", f"ds_write_b128 v{vTw}, {q4(box['pk'])} offset:{slot*1024}")
            pkfree.append(box["pk"])
        def rd():
            box["rb"] = rbfree.pop(0)
            e.lds(f"T{slot}r", f"ds_read_b128 {q4(box['rb'])}, v{vTr} offset:{slot*1024}")
        def wt(): e.wait_lg(f"T{slot}r")
        def st():
            src = box["rb"] if lt else box["pk"]
            so = (s_o01 + tile) if tile < NDT else (s_or + tile % 4)
            if opt.get("xp192"):
                e.vmem("ST", f"buffer_store_dwordx4 {q4(src)}, v{vP+p}, s[{sO}:{sO+3}], s{so} offen{fl}")
            elif opt.get("cdata"):
                e.vmem("ST", f"buffer_store_dwordx4 {q4(vBias)}, v{vO2 if lt else vO}, s[{sO}:{sO+3}], s{so} offen{off}{fl}")
            elif not opt.get("nost"):
                e.vmem("ST", f"buffer_store_dwordx4 {q4(src)}, v{vO2 if lt else vO}, s[{sO}:{sO+3}], s{so} offen{off}{fl}")
            (rbfree if lt else pkfree).append(src)
        if lt: return [c0, c1], [c2, c3], [wr, rd, wt, st]
        return [c0, c1], [c2, c3], [st]
    SPREAD = ints(opt.get("spread", {2: "2,3,4,5,6,7", 3: "3,4,5,6,7,8,9,10,11", 4: "4,4,5,6,6,7,8,8,9,10,10,11"}[NDT]))
    deferred = {}
    def defer(k, fin, minpos=None):
        tl_ = SPREAD[k]
        nth = len([1 for kk in range(k) if SPREAD[kk] == tl_])
        p0 = ints(opt.get("defpos", "40,16,64"))[nth]
        if minpos is not None: p0 = max(p0, minpos)
        deferred.setdefault(tl_, []).extend([(p0, fin[1]), (p0 + 6, fin[2]), (p0 + 7, fin[3])])
    carry = []
    for tile in range(2):
        for p in range(3):
            c01, c23, fin = epi_ops((acc[tile][2*p], acc[tile][2*p+1]), p, tile)
            carry.append((c01 + c23, fin))
    def steady(i, carry_sched, force=None, record=None, bunch=None):
        cm(f"---- output row {i} ----")
        ex = {}
        def put(n, f): ex.setdefault(n, []).append(f)
        for n, L in carry_sched.items():
            for f in L: put(n, f)
        for n, f in deferred.get(i, []): put(n, f)
        put(1, lambda: a(f"s_add_u32 s{s_or + i % 4}, s{s_or + (i-1) % 4}, {OROW2}"))
        if i == 2: put(4, lambda: e.wait_lg("F3"))
        if i == opt.get("tewt", -1): put(opt.get("tewpos", 0), lambda: e.wait_vm("TE"))
        r = i + 2
        if i + 3 <= 13 and not opt.get("nodma") and bunch != "dma":
            dp = ints(opt.get("dma2", "50,55,60,65")) if i == 2 else ints(opt.get("dmapos", "2,4,26,28"))
            if isinstance(bunch, list):
                for k in range(2, 4): put(dp[k], bunch[1+k])
            else:
                L = xrow_dma(i + 3)
                put(dp[0] - 1, L[0])
                for k in range(4): put(dp[k], L[1+k])
        if r <= 13 and bunch != "F":
            if not opt.get("nodma") or r < 5: put(opt.get("xwpos", 40), lambda: e.wait_vm(f"X{r}"))
            rp = ints(opt.get("rdpos", "41,42,43,50,51,52"))
            for k, f in enumerate(f_reads(r)): put(rp[k], f)
            put(66, lambda: e.wait_lg(f"F{r}"))
        accs = []
        nxt = {}
        for t in range(6):
            if force is None: d = take()
            else:
                d = force[t]; free.remove((d - vAcc)//4)
            accs.append(d)
            if record is not None: record.append(d)
            for q in range(12):
                n = 12*t + q
                aa, b, ks = qabk(q)
                row = i + (1 - aa)
                c = (vBias + 4*t) if q == 0 else d
                if PM == 6 and i == opt.get("ptile", 2) and q == 0: stamp(t, 6)
                if PM == 6 and i == opt.get("ptile", 2) + 1 and n == 0: stamp(6, 6)
                if PM == 6 and i == opt.get("ptile", 2) + 1 and n == 36: stamp(7, 6)
                mf(d, q*6 + t, Ffrag(row, b, ks), c)
                for f in ex.get(n, []): f()
            if t % 2 == 1:
                p = t//2
                c01, c23, fin = epi_ops((accs[t-1], accs[t]), p, i)
                base = 12*t + 12
                so_ = ints(opt.get("stoff", "10,10,10"))[p] if i >= NDT else 10
                tgt = [(base + 0, c01[0]), (base + 1, c01[1]), (base + 8, c23[0]), (base + 9, c23[1]), (base + so_, fin[0])]
                if i < NDT and force is None:
                    assert SPREAD[3*i + p] > i
                    defer(3*i + p, fin)
                for n_, f in tgt:
                    if n_ < 72: put(n_, f)
                    else: nxt.setdefault(n_ - 72, []).append(f)
        return nxt
    cs = {}
    cstep = opt.get("cstep", 6)
    for k, (cv_, fin) in enumerate(carry):
        b0 = cstep*k
        for j, f in enumerate(cv_): cs.setdefault(b0 + j, []).append(f)
        cs.setdefault(b0 + 4, []).append(fin[0])
        defer(k, fin, b0 + 6 if SPREAD[k] == 2 else None)
    def tail(em_carry):
        cm("---- last quarter of the last row ----")
        a("s_nop 7")
        for n in sorted(em_carry):
            for f in em_carry[n]: f()
    def prof_dump(em):
        if not T0: return
        b = em.a
        b("s_waitcnt vmcnt(0)")
        if PM == 1: b(f"s_memrealtime s[{70+14}:{71+14}]")
        b("s_waitcnt lgkmcnt(0)")
        b("s_load_dwordx2 s[4:5], s[0:1], 40")
        b("s_waitcnt lgkmcnt(0)")
        b("s_mov_b32 s8, s4"); b("s_and_b32 s9, s5, 0xffff"); b("s_mov_b32 s10, 0x10000000"); b("s_mov_b32 s11, 0x20000")
        b("v_mov_b32 v1, 0")
        for i in range(8): b(f"v_writelane_b32 v1, s{70+2*i}, {i}")
        b(f"v_writelane_b32 v1, s{s_R}, 14")
        b("s_sub_u32 s86, s88, s86")
        b(f"v_writelane_b32 v1, s86, 13")
        b("s_getreg_b32 s87, hwreg(HW_REG_XCC_ID)")
        b(f"v_writelane_b32 v1, s87, 12")
        b(f"s_lshl_b32 s6, s2, 2"); b(f"s_add_u32 s6, s6, s{s_w}"); b("s_lshl_b32 s6, s6, 6")
        b("v_lshlrev_b32 v3, 2, v0")
        b("v_cmp_gt_u32 vcc, 16, v0")
        b("s_and_saveexec_b64 s[12:13], vcc")
        b("buffer_store_dword v1, v3, s[8:11], s6 offen")
        b("s_waitcnt vmcnt(0)")
    nxt = cs
    saved = None
    STAG = opt.get("stag", 1)
    VERS = {}; vstate = {}; vrec = {}
    if STAG >= 1:
        VERS[2] = ("carry", opt.get("bit2", "x"), 0, ["half of the workgroups convert the first two rows before row 2 instead of inside it:",
                                   "this de-synchronises the write bursts of neighbouring CUs and dies"])
    if STAG >= 2: VERS[3] = ("dma", opt.get("bit3", 6), 1, [])
    if STAG >= 3: VERS[opt.get("tile4", 5)] = (opt.get("kind4", "half"), opt.get("bit4", 5), 1, [])
    tl = ints(opt.get("tl", "2,3,4,5,6,8,10"))
    for i in range(2, 13):
        if i == 12:
            a(f"s_cmp_eq_u32 s{s_R}, 12")
            a("s_cbranch_scc1 L_tail12")
            saved = (e.clone(), dict(nxt), list(pkfree), list(rbfree))
        if opt.get("dvar") and i == opt.get("dstile", 2):
            mode = opt["dvar"]
            if mode == "x8": a("s_and_b32 s90, s2, 7")
            elif mode == "x8r":
                a("s_and_b32 s90, s2, 7"); a("s_sub_u32 s90, 7, s90")
            elif mode == "ph": a("s_bfe_u32 s90, s2, 0x20003")
            elif mode == "w": a(f"s_mov_b32 s90, s{s_w}")
            elif mode == "xw":
                a("s_and_b32 s90, s2, 1"); a("s_lshl_b32 s90, s90, 2"); a(f"s_add_u32 s90, s90, s{s_w}")
            elif mode == "g8": a("s_lshr_b32 s90, s2, 5")
            elif mode == "k4":
                a("s_and_b32 s90, s2, 1"); a("s_xor_b32 s90, s90, 1"); a("s_lshl_b32 s90, s90, 1")
                a("s_bfe_u32 s91, s2, 0x10005"); a("s_add_u32 s90, s90, s91")
            elif mode in ("ab", "abx"):
                a("s_bfe_u32 s90, s2, 0x10005")
                if mode == "abx":
                    a("s_and_b32 s91, s2, 1"); a("s_xor_b32 s90, s90, s91")
                a("s_mul_i32 s90, s90, 3")
                a("s_bfe_u32 s91, s2, 0x10006"); a("s_lshl_b32 s91, s91, 2"); a("s_add_u32 s90, s90, s91")
            elif mode == "g4":
                a("s_bfe_u32 s90, s2, 0x20005")
            elif mode == "g2":
                a("s_bfe_u32 s90, s2, 0x10005")
            elif mode == "p4":
                a("s_bfe_u32 s90, s2, 0x20003")
            e.lab("L_dv")
            a("s_cmp_eq_u32 s90, 0")
            a("s_cbranch_scc1 L_dvdone")
            a("s_sleep %d" % opt.get("dunit", 1))
            a("s_sub_u32 s90, s90, 1")
            a("s_branch L_dv")
            e.lab("L_dvdone")
        if opt.get("dsleep") and i == opt.get("dstile", 2):
            a("s_bitcmp1_b32 s2, %d" % opt.get("dsbit", 2))
            a("s_cbranch_scc%d L_nosleep" % (1 if opt.get("dsinv") else 0))
            a("s_sleep %d" % opt["dsleep"])
            e.lab("L_nosleep")
        if i in tl: stamp(1 + tl.index(i), 5)
        if i == 3: stamp(7, 7)
        if i in VERS:
            kind, bit, scc, why = VERS[i]
            if i - 1 in VERS: e.lab(f"L_row{i}")
            for w_ in why: cm(w_)
            if bit == "x":
                a(f"s_lshr_b32 s{s_t0}, s2, 5")
                a(f"s_xor_b32 s{s_t0}, s{s_t0}, s2")
                a(f"s_bitcmp1_b32 s{s_t0}, 0")
            else:
                a(f"s_bitcmp1_b32 s2, {bit}")
            a(f"s_cbranch_scc{scc} L_row{i}_alt")
            vstate[i] = (e.clone(), list(free), list(pkfree), list(rbfree), dict(nxt))
            vrec[i] = []
            nxt = steady(i, nxt, record=vrec[i])
            if i + 1 not in VERS: e.lab(f"L_row{i+1}")
        else:
            nxt = steady(i, nxt)
    stamp(6); cstamp(1)
    tail(nxt)
    prof_dump(e)
    a("s_endpgm")
    em0, nx0, pk0, rb0 = saved
    L_main = e.L
    e.L = []; e.vm = em0.vm; e.lg = em0.lg; e.vm_done = em0.vm_done; e.lg_done = em0.lg_done
    pkfree[:] = pk0; rbfree[:] = rb0
    e.lab("L_tail12")
    stamp(6); cstamp(1)
    tail(nx0)
    prof_dump(e)
    e.lab("L_end")
    a("s_endpgm")
    for i in sorted(VERS):
        kind = VERS[i][0]
        emB, frB, pkB, rbB, csB = vstate[i]
        e.vm = emB.vm; e.lg = emB.lg; e.vm_done = emB.vm_done; e.lg_done = emB.lg_done
        free[:] = frB; pkfree[:] = pkB; rbfree[:] = rbB
        e.lab(f"L_row{i}_alt")
        if kind == "carry":
            for n in sorted(csB):
                for f in csB[n]: f()
            steady(i, {}, force=vrec[i])
        elif kind == "dma":
            L = xrow_dma(i + 3)
            seq = [f for n in sorted(csB) for f in csB[n]]
            L[0](); seq[0]()
            for f in L[1:]: f()
            for f in seq[1:]: f()
            steady(i, {}, force=vrec[i], bunch="dma")
        elif kind == "half":
            L = xrow_dma(i + 3)
            seq = [f for n in sorted(csB) for f in csB[n]]
            L[0](); seq[0](); L[1](); L[2](); seq[1]()
            a("s_nop 0");
            for f in seq[2:]: f()
            steady(i, {}, force=vrec[i], bunch=L)
        elif kind == "same":
            steady(i, csB, force=vrec[i])
        elif kind == "epi":
            seq = [f for n in sorted(csB) for f in csB[n]]
            seq[0](); seq[1]()
            a("s_nop 3")
            for f in seq[2:]: f()
            steady(i, {}, force=vrec[i])
        elif kind == "F":
            e.wait_vm(f"X{i+2}")
            for f in f_reads(i + 2): f()
            e.wait_lg(f"F{i+2}")
            steady(i, csB, force=vrec[i], bunch="F")
        a(f"s_branch L_row{i+1}")
    e.lab("L_codeend")
    body = "\n".join(L_main + e.L)
    hdr = f"""; ConvTranspose2d(k=4, stride 2, pad 1), NHWC bf16: x[224][224][96], w[4][4][96][96], b[96] -> out[448][448][96]
; out[2m+py][2n+px] = b + sum over a,b in {{0,1}} of x[m+py-a][n+px-b] . w[1-py+2a][1-px+2b]   (4 phases, K = 4*96)
; One workgroup = one phase (py,px); the 4 taps (96x96 each) live in registers (288 per lane) as MFMA A operands.
; @launch grid=(256,1,1) block=(256,1,1) lds={LDS}
.amdgcn_target "amdgcn-amd-amdhsa--gfx950"
.text
.globl {KNAME}
.p2align 8
.type {KNAME},@function
{KNAME}:
{body}
.section .rodata,"a"
.p2align 6
.amdhsa_kernel {KNAME}
  .amdhsa_next_free_vgpr 512
  .amdhsa_next_free_sgpr 100
  .amdhsa_accum_offset 256
  .amdhsa_group_segment_fixed_size 0
  .amdhsa_kernarg_size 48
  .amdhsa_user_sgpr_count 2
  .amdhsa_user_sgpr_kernarg_segment_ptr 1
  .amdhsa_system_sgpr_workgroup_id_x 1
.end_amdhsa_kernel
"""
    return hdr

if __name__ == "__main__":
    import mk
    out = sys.argv[1] if len(sys.argv) > 1 else "final.s"
    opt = {}
    for x in sys.argv[2:]:
        k, v = x.split("=")
        opt[k] = int(v) if v.lstrip("-").isdigit() else v
    open(out, "w").write(gen(opt))
    print(mk.build(out))
```
